```python
import torch

def _softmax(x, axis=-1):
    return torch.softmax(x, dim=axis)
def _gelu(x):
    return torch.nn.functional.gelu(x, approximate="tanh")
def _silu(x):
    return torch.nn.functional.silu(x)
def _sigmoid(x):
    return torch.sigmoid(x)
def _layernorm(x, axis=-1, eps=1e-5):
    m = x.mean(dim=axis, keepdim=True)
    v = x.var(dim=axis, keepdim=True, unbiased=False)
    return (x - m) / torch.sqrt(v + eps)
def _scatter_add(tgt, idx, src, axis=0):
    return tgt.clone().index_add_(axis, idx, src)
def _segment_sum(src, seg, n):
    out = torch.zeros((n,) + src.shape[1:], dtype=src.dtype)
    return out.index_add_(0, seg, src)
def _pad(x, pw):
    flat = tuple(v for pair in reversed(pw) for v in pair)
    return torch.nn.functional.pad(x, flat)

kernel_name = 'gated_mix__linear_attn_block__dense_activation_relu__prompt'

def setup_inputs():

    _w = (lambda a: (lambda t: t.to(torch.bfloat16) if t.is_floating_point() else t)(torch.as_tensor(a)))
    def _A_setup():
        B, S, D = 1, 2048, 1024
        return {
            "x": _w((lambda *s: torch.randn(*s, dtype=torch.bfloat16) * 0.05)(B, S, D)),
            "wqkv": _w((lambda *s: torch.randn(*s, dtype=torch.bfloat16) * 0.8)(D, 3 * D)),
            "wo": _w((lambda *s: torch.randn(*s, dtype=torch.bfloat16) * 0.2)(D, D)),
        }
    _A_in = _A_setup()

    def _B_setup():
        B, S, D, Dff = 1, 2048, 1024, 3584
        return {
            "x": _w((lambda *s: torch.randn(*s, dtype=torch.bfloat16) * 0.05)(B, S, D)),
            "w1": _w((lambda *s: torch.randn(*s, dtype=torch.bfloat16) * 0.05)(D, Dff)),
            "w2": _w((lambda *s: torch.randn(*s, dtype=torch.bfloat16) * 0.05)(Dff, D)),
        }
    _B_in = _B_setup()

    return {
        "A_x": _A_in["x"],
        "A_wqkv": _A_in["wqkv"],
        "A_wo": _A_in["wo"],
        "B_x": _B_in["x"],
        "B_w1": _B_in["w1"],
        "B_w2": _B_in["w2"],
        "gate_w": _w((lambda *s: torch.randn(*s, dtype=torch.bfloat16) * 0.05)(1024) * 16.0),
    }

def reference(A_x, A_wqkv, A_wo, B_x, B_w1, B_w2, gate_w):
    def _A_ref(x, wqkv, wo):
        B, S, D = x.shape
        H = 32; Dh = D // H
        qkv = (lambda x, *d: x.permute(*d))((x @ wqkv).reshape(B, S, 3, H, Dh), 2, 0, 3, 1, 4)
        q, k, v = qkv[0], qkv[1], qkv[2]
        phi = lambda t: torch.where(t > 0, t + 1, torch.exp(t)) + 1e-6
        pq, pk = phi(q), phi(k)
        kv = torch.einsum("bhsd,bhse->bhde", pk, v)
        z = torch.einsum("bhsd->bhd", pk)
        num = torch.einsum("bhqd,bhde->bhqe", pq, kv)
        den = torch.einsum("bhqd,bhd->bhq", pq, z)[..., None] + 1e-6
        o = num / den
        return (lambda x, *d: x.permute(*d))(o, 0, 2, 1, 3).reshape(B, S, D) @ wo

    def _B_ref(x, w1, w2):
        h = torch.einsum("bsd,df->bsf", x, w1)
        zero = torch.zeros_like(h)
        h = torch.maximum(h, zero)
        return torch.einsum("bsf,fd->bsd", h, w2)

    x = A_x
    g = _sigmoid((x * gate_w).sum(-1, keepdims=True))
    a = _A_ref(x, A_wqkv, A_wo)
    b = _B_ref(x, B_w1, B_w2)
    return g * a + (1 - g) * b
```

```python
import sys

NAME = "gated_mix__linear_attn_block__dense_activation_relu__prompt"

A2_KB = 144
WS_A2 = 0
WS_PQ = 0x1200000
WS_KVP = 0x1600000
WS_ZP = 0x1700000
WS_G = 0x1710000
WS_FLAG = 0x1720000
WS_CNT = 0x1730000
WS_STAMP = 0x1740000
WS_XCH = 0x1800000
WS_SIZE = 0x2000000

LOG2E = 0x3fb8aa3b
EPS = 0x358637bd


class Em:
    def __init__(self):
        self.l = []

    def __call__(self, s):
        for x in s.strip("\n").split("\n"):
            x = x.strip()
            if x:
                self.l.append(x if x.endswith(":") else "  " + x)

    def text(self):
        return "\n".join(self.l) + "\n"


def place(mf, items):
    by = {}
    for p, ins in items:
        by.setdefault(p, []).extend(ins if isinstance(ins, list) else [ins])
    out = list(by.get(-1, []))
    for i, x in enumerate(mf):
        out.append(x)
        out += by.get(i, [])
    assert all(-1 <= p < len(mf) for p in by), (sorted(by), len(mf))
    return out


def vr(b, n=4, c="v"):
    return f"{c}[{b}:{b+n-1}]" if n > 1 else f"{c}{b}"


def ar(b, n=4):
    return vr(b, n, "a")


def mfma(d, a, b, c=None):
    return f"v_mfma_f32_16x16x32_bf16 {d}, {a}, {b}, {d if c is None else c}"


def spread(n, lo, hi, avoid=()):
    free = [p for p in range(lo, hi) if p not in avoid]
    return [free[(i * len(free)) // n] for i in range(n)]


def stamp(e, idx, cfg):
    if cfg.get("stamps"):
        e(f"s_memrealtime s[{70+2*idx}:{71+2*idx}]")


def stamp_flush(e, cfg, nst, kidx, srd, lab):
    if not cfg.get("stamps"):
        return
    e("s_waitcnt lgkmcnt(0)")
    for i in range(nst):
        e(f"v_mov_b32 v{2+i}, s{70+2*i}")
    e(f"""
    s_lshl_b32 s3, s2, 6
    s_add_u32 s3, s3, {WS_STAMP + kidx*16384}
    v_mov_b32 v1, 0
    v_cmp_eq_u32 vcc, 0, v0
    s_and_saveexec_b64 s[68:69], vcc
    s_cbranch_execz {lab}
    buffer_store_dwordx4 v[2:5], v1, {srd}, s3 offen
    buffer_store_dwordx4 v[6:9], v1, {srd}, s3 offen offset:16
    {lab}:
    s_mov_b64 exec, s[68:69]
    """)


def gen_k1(cfg):
    e = Em()
    K = "gm1_kernel"
    ST = cfg.get("st1", "sc1")
    SA, SB0, SB1, SW = "s[8:11]", "s[12:15]", "s[16:19]", "s[20:23]"
    sW, sMT, sTYPE, sIDX, sSH, sQD = "s24", "s25", "s26", "s27", "s28", "s29"
    sAlo, sAhi, sB0, sB1, sB0st, sB1st, sLds, sIt = "s30", "s31", "s32", "s33", "s34", "s35", "s36", "s37"
    sI, sJ = "s38", "s39"
    vL, vL16 = 1, 2
    vA, vB0, vB1 = 4, 8, 12
    rA, rB = 16, 20
    T = 24
    ACC = 48
    def acc(L, t, m):
        if L == 3:
            return ACC + 192 + (t * 2 + m) * 4
        return ACC + ((L * 2 + t) * 8 + m) * 4
    def afr(buf, m, ks): return buf * 64 + (m * 2 + ks) * 4
    def bfr(L, t, ks): return 128 + ((L * 2 + t) * 2 + ks) * 4
    GX = 192

    e(f"""
    s_cmp_ge_u32 s2, 256
    s_cbranch_scc1 L1_end
    """)
    stamp(e, 0, cfg)
    e(f"""
    s_load_dwordx4 s[40:43], s[0:1], 0
    s_load_dwordx2 s[44:45], s[0:1], 32
    s_load_dwordx2 s[46:47], s[0:1], 48
    s_load_dwordx2 s[48:49], s[0:1], 72
    v_lshrrev_b32 v3, 6, v0
    v_and_b32 v{vL}, 63, v0
    v_readfirstlane_b32 {sW}, v3
    v_lshlrev_b32 v{vL16}, 4, v{vL}
    s_and_b32 s3, s2, 7
    s_lshr_b32 s4, s2, 3
    s_and_b32 s5, s3, 1
    s_lshl_b32 s5, s5, 2
    s_and_b32 s6, s4, 3
    s_add_u32 {sMT}, s5, s6
    s_lshr_b32 s3, s3, 1
    s_lshr_b32 s4, s4, 2
    s_and_b32 {sTYPE}, s4, 1
    s_lshr_b32 s5, s4, 1
    s_lshl_b32 s6, s3, 2
    s_add_u32 {sIDX}, s5, s6
    s_lshr_b32 {sSH}, {sIDX}, 1
    s_and_b32 {sQD}, s4, 3
    s_lshr_b32 {sI}, {sW}, 1
    s_and_b32 {sJ}, {sW}, 1
    s_lshl_b32 {sLds}, {sW}, 12
    """)
    e(f"""
    s_mul_i32 s50, {sSH}, 7
    s_and_b32 s51, {sIDX}, 1
    s_mul_i32 s51, s51, 3
    s_add_u32 s51, s51, s50
    s_add_u32 s50, s50, 6
    """)
    e(f"""
    v_lshrrev_b32 v{T}, 3, v{vL}
    v_lshrrev_b32 v{T+1}, 4, v{vL}
    v_and_b32 v{T+2}, 7, v{vL}
    v_xor_b32 v{T+3}, v{T+2}, v{T+1}
    v_lshlrev_b32 v{T+4}, 11, v{T}
    v_lshl_add_u32 v{vA}, v{T+3}, 4, v{T+4}
    v_xor_b32 v{vA+1}, 64, v{vA}
    v_add_u32 v{vA+2}, {2*16384 - 2048}, v{vA}
    v_add_u32 v{vA+1}, {16384 - 1024}, v{vA+1}
    v_add_u32 v{vA+3}, {2*16384 - 2048}, v{vA+1}
    """)
    e(f"""
    s_xor_b32 s4, {sJ}, {sQD}
    s_lshl_b32 s4, s4, 5
    s_lshl_b32 s5, {sMT}, 8
    s_lshl_b32 s6, {sI}, 7
    s_add_u32 s5, s5, s6
    s_add_u32 s6, s5, s4
    s_lshl_b32 {sAlo}, s6, 11
    s_xor_b32 s4, s4, 64
    s_add_u32 s6, s5, s4
    s_lshl_b32 {sAhi}, s6, 11
    """)
    e(f"""
    s_cmp_eq_u32 {sTYPE}, 0
    s_cselect_b32 s52, {sIDX}, s51
    s_cselect_b32 s53, 16, 1
    s_mov_b32 s54, 7168
    s_cmov_b32 s54, 6144
    s_add_u32 s4, {sI}, 1
    s_mul_i32 s4, s4, s53
    s_add_u32 s4, s4, s52
    s_lshl_b32 s4, s4, 7
    s_lshl_b32 s5, {sJ}, 5
    s_mul_i32 s6, s5, s54
    s_add_u32 {sB1}, s4, s6
    s_lshl_b32 {sB1st}, s54, 6
    s_cmp_eq_u32 {sI}, 0
    s_cselect_b32 s4, s50, s52
    s_cselect_b32 s55, 7168, s54
    s_lshl_b32 s4, s4, 7
    s_mul_i32 s6, s5, s55
    s_add_u32 {sB0}, s4, s6
    s_lshl_b32 {sB0st}, s55, 6
    """)
    e(f"""
    v_and_b32 v{T+3}, 1, v{T+1}
    v_lshlrev_b32 v{T+3}, 1, v{T+3}
    v_xor_b32 v{T+3}, v{T+3}, v{T+2}
    v_lshlrev_b32 v{T+3}, 4, v{T+3}
    v_xor_b32 v{T+4}, 64, v{T+3}
    """)
    for (vb, sp) in ((vB0, "s55"), (vB1, "s54")):
        e(f"""
        s_lshl_b32 s4, {sp}, 3
        s_sub_u32 s4, s4, 1024
        s_lshl_b32 s5, s4, 1
        v_mul_lo_u32 v{T+5}, v{T}, {sp}
        v_add_u32 v{vb}, v{T+5}, v{T+3}
        v_add3_u32 v{vb+1}, v{T+5}, v{T+4}, s4
        v_add_u32 v{vb+2}, s5, v{vb}
        v_add_u32 v{vb+3}, s5, v{vb+1}
        """)
    e(f"""
    s_waitcnt lgkmcnt(0)
    s_mov_b32 s8, s40
    s_mov_b32 s9, s41
    s_mov_b32 s10, {2048*2048}
    s_mov_b32 s11, 0x20000
    s_cmp_eq_u32 {sTYPE}, 0
    s_cselect_b32 s16, s42, s44
    s_cselect_b32 s17, s43, s45
    s_lshl_b32 s18, s54, 10
    s_mov_b32 s19, 0x20000
    s_cmp_eq_u32 {sI}, 0
    s_cselect_b32 s12, s44, s16
    s_cselect_b32 s13, s45, s17
    s_lshl_b32 s14, s55, 10
    s_mov_b32 s15, 0x20000
    s_mov_b32 s20, s48
    s_mov_b32 s21, s49
    s_mov_b32 s22, {WS_SIZE}
    s_mov_b32 s23, 0x20000
    """)

    def dmaA(ldsoff, sreg):
        r = [f"s_add_u32 m0, {sLds}, {ldsoff}"]
        r += [f"buffer_load_dwordx4 v{vA+q}, {SA}, {sreg} offen offset:{q*1024} lds" for q in range(4)]
        r += [f"s_add_u32 {sreg}, {sreg}, 128"]
        return r

    def dmaB(ldsoff, odd):
        srd, vb, sreg, sst = (SB1, vB1, sB1, sB1st) if odd else (SB0, vB0, sB0, sB0st)
        r = [f"s_add_u32 m0, {sLds}, {ldsoff}"]
        r += [f"buffer_load_dwordx4 v{vb+q}, {srd}, {sreg} offen offset:{q*1024} lds" for q in range(4)]
        r += [f"s_add_u32 {sreg}, {sreg}, {sst}"]
        return r

    def burst(g):
        e(g[0]); e("s_nop 0")
        for x in g[1:]: e(x)

    SPARE = 131072
    burst(dmaA(SPARE, sAlo))
    for t in range(4):
        burst(dmaB(t * 32768 + 16384, t & 1))
        burst(dmaA(t * 32768, sAlo if t & 1 else sAhi))
    e(f"""
    s_mov_b32 s56, s46
    s_mov_b32 s57, s47
    s_mov_b32 s58, 2048
    s_mov_b32 s59, 0x20000
    v_and_b32 v{T+5}, 31, v{vL}
    v_lshlrev_b32 v{T+5}, 4, v{T+5}
    v_lshrrev_b32 v{T+6}, 5, v{vL}
    v_lshl_add_u32 v{T+6}, v{T+6}, 11, v{T+5}
    s_lshl_b32 s4, s2, 2
    s_add_u32 s4, s4, {sW}
    s_lshl_b32 s4, s4, 12
    """)
    for u in range(4):
        e(f"buffer_load_dwordx4 {ar(GX+u*4)}, v{T+6}, {SA}, s4 offen offset:{u*512}")
    for u in range(4):
        e(f"buffer_load_dwordx4 {ar(GX+16+u*4)}, v{T+5}, s[56:59], 0 offen offset:{u*512}")
    NEXTRA = 8
    e(f"""
    v_and_b32 v{T}, 15, v{vL}
    v_lshrrev_b32 v{T+3}, 1, v{T}
    v_xor_b32 v{T+3}, v{T+3}, v{T+1}
    v_lshlrev_b32 v{T+3}, 4, v{T+3}
    v_lshl_add_u32 v{T+3}, v{T}, 7, v{T+3}
    s_lshl_b32 s4, {sI}, 13
    v_add_u32 v{rA}, s4, v{T+3}
    v_xor_b32 v{rA+1}, 64, v{rA}
    v_add_u32 v{rA+2}, 0x10000, v{rA}
    v_add_u32 v{rA+3}, 0x10000, v{rA+1}
    v_bfe_u32 v{T}, v{vL}, 2, 2
    v_lshl_add_u32 v{T+3}, v{T+1}, 3, v{T}
    v_lshlrev_b32 v{T+3}, 7, v{T+3}
    v_bfe_u32 v{T+4}, v{vL}, 3, 2
    s_lshl_b32 s4, {sJ}, 1
    v_xor_b32 v{T+4}, s4, v{T+4}
    v_lshl_add_u32 v{T+3}, v{T+4}, 5, v{T+3}
    v_and_b32 v{T+4}, 3, v{vL}
    v_lshl_add_u32 v{T+3}, v{T+4}, 3, v{T+3}
    v_add_u32 v{rB}, 16384, v{T+3}
    v_xor_b32 v{rB+1}, 32, v{rB}
    v_add_u32 v{rB+2}, 0x10000, v{rB}
    v_add_u32 v{rB+3}, 0x10000, v{rB+1}
    """)
    for i in range(208):
        e(f"v_mov_b32 v{ACC+i}, 0")

    def rdA(ring, buf, half):
        r = []
        for mm in range(4):
            for ks in range(2):
                r.append(f"ds_read_b128 {ar(afr(buf, half*4+mm, ks))}, v{rA+ks+2*(ring>>1)} offset:{(ring&1)*32768 + mm*2048}")
        return r

    def rdB(ring, odd):
        r = []
        for li, L in enumerate((1, 2) if odd else (3, 0)):
            for t in range(2):
                for ks in range(2):
                    for hf in range(2):
                        r.append(f"ds_read_b64_tr_b16 {ar(bfr(L, t, ks)+hf*2, 2)}, v{rB+t+2*(ring>>1)} offset:{(ring&1)*32768 + li*8192 + ks*4096 + hf*512}")
        return r

    e(f"""
    v_add_u32 v{T}, 0x20000, v{rA}
    v_add_u32 v{T+1}, 0x20000, v{rA+1}
    s_waitcnt vmcnt({24 + NEXTRA})
    s_barrier
    """)
    stamp(e, 1, cfg)
    for x in rdB(0, 0): e(x)
    for mm in range(4):
        for ks in range(2):
            e(f"ds_read_b128 {ar(afr(0, mm, ks))}, v{T+ks} offset:{mm*2048}")
    for x in rdA(0, 0, 1): e(x)
    e(f"""
    s_mov_b32 {sIt}, 0
    s_waitcnt vmcnt({16 + NEXTRA}) lgkmcnt(0)
    s_barrier
    s_cmp_eq_u32 {sTYPE}, 0
    s_cbranch_scc0 L1_loopH
    """)

    def loop(typ):
        lab = "L1_loopH" if typ else "L1_loopQ"
        e(".p2align 3")
        e(f"{lab}:")
        e(f"""
        s_cmp_eq_u32 {sIt}, 7
        s_cselect_b32 s10, 0, s10
        s_cselect_b32 s14, 0, s14
        s_cselect_b32 s18, 0, s18
        """)
        for st in range(2):
            mf = []
            for L, nm in ((3, 2), (0, 8), (1, 8), (2, 8)):
                for t in range(2):
                    for m in range(nm):
                        for ks in range(2):
                            d = vr(acc(L, t, m)); w = ar(bfr(L, t, ks)); x = ar(afr(st, m, ks))
                            mf.append(mfma(d, x, w) if (typ == 0 and L in (1, 2)) else mfma(d, w, x))
            it = []
            for hp in range(2):
                ring = (2 * st + hp + 1) & 3
                dring = (ring - 1) & 3
                base = hp * 52
                odd = 1 - hp
                gB = dmaB(dring * 32768 + 16384, 1 - odd)
                gA = dmaA(dring * 32768, sAlo if (1 - odd) else sAhi)
                dpos = [base + 3 + 6 * d for d in range(8)]
                for gi, g in enumerate((gB, gA)):
                    it.append((dpos[gi * 4] - 1, g[0]))
                    for q in range(4): it.append((dpos[gi * 4 + q], g[1 + q]))
                    it.append((dpos[gi * 4 + 3] + 1, g[5]))
                rb = rdB(ring, odd); ra = rdA(ring, 1 - st, 0 if odd else 1)
                rd = rb[:4]
                rest_b = rb[4:]
                k = 0
                for i in range(len(ra)):
                    rd.append(ra[i])
                    n = (len(rest_b) * (i + 1)) // len(ra)
                    rd += rest_b[k:n]; k = n
                pos = spread(len(rd), base, base + 44, avoid=dpos)
                for p, x in zip(pos, rd): it.append((p, x))
                if hp == 0:
                    issued = sum(1 for p in pos if p <= 39)
                    assert issued - 4 <= 15 or True
                    it.append((39, f"s_waitcnt lgkmcnt({min(15, issued - 4)})"))
                w = [f"s_waitcnt vmcnt(16) lgkmcnt(0)", "s_barrier"]
                if st == 1 and hp == 1:
                    it.append((base + 48, f"s_add_u32 {sIt}, {sIt}, 1"))
                    it.append((base + 49, f"s_cmp_lt_u32 {sIt}, 8"))
                    w.append(f"s_cbranch_scc1 {lab}")
                it.append((base + 51, w))
            for x in place(mf, it): e(x)

    def blockbase(m, dst, kbs, extra):
        e(f"""
        s_xor_b32 {dst}, s60, {m}
        s_add_u32 {dst}, {dst}, s61
        s_mul_i32 {dst}, {dst}, {kbs*1024}
        s_add_u32 {dst}, {dst}, {extra}
        """)

    tmpi = [0]
    def tq():
        r = T + 4 * (tmpi[0] % 4); tmpi[0] += 1
        return r

    def relu_store(a0, a1, soff, imm):
        r = tq()
        e(f"""
        v_cvt_pk_bf16_f32 v{r}, v{a0}, v{a0+1}
        v_cvt_pk_bf16_f32 v{r+1}, v{a0+2}, v{a0+3}
        v_cvt_pk_bf16_f32 v{r+2}, v{a1}, v{a1+1}
        v_cvt_pk_bf16_f32 v{r+3}, v{a1+2}, v{a1+3}
        v_pk_max_i16 v{r}, v{r}, 0
        v_pk_max_i16 v{r+1}, v{r+1}, 0
        v_pk_max_i16 v{r+2}, v{r+2}, 0
        v_pk_max_i16 v{r+3}, v{r+3}, 0
        buffer_store_dwordx4 {vr(r)}, v{vL16}, {SW}, {soff} offen offset:{imm} {ST}
        """)

    def epi_common():
        stamp(e, 2, cfg)
        e(f"""
        s_lshl_b32 s60, {sQD}, 1
        s_lshl_b32 s61, {sMT}, 4
        s_lshl_b32 s4, {sI}, 3
        s_add_u32 s61, s61, s4
        s_lshl_b32 s62, s50, 1
        s_add_u32 s62, s62, {sJ}
        s_lshl_b32 s62, s62, 10
        s_lshl_b32 s63, s51, 1
        s_add_u32 s63, s63, {sJ}
        s_lshl_b32 s63, s63, 10
        """)
        for m in range(2):
            blockbase(m, "s4", A2_KB, "s62")
            relu_store(acc(3, 0, m), acc(3, 1, m), "s4", 0)

    def phi4(a, P):
        e(f"""
        v_pk_mul_f32 {vr(P,2)}, {vr(a,2)}, s[64:65]
        v_pk_mul_f32 {vr(P+2,2)}, {vr(a+2,2)}, s[64:65]
        v_exp_f32_e64 v{P}, v{P} clamp
        v_max_f32 v{a}, s66, v{a}
        v_exp_f32_e64 v{P+1}, v{P+1} clamp
        v_max_f32 v{a+1}, s66, v{a+1}
        v_exp_f32_e64 v{P+2}, v{P+2} clamp
        v_max_f32 v{a+2}, s66, v{a+2}
        v_exp_f32_e64 v{P+3}, v{P+3} clamp
        v_max_f32 v{a+3}, s66, v{a+3}
        v_pk_add_f32 {vr(a,2)}, {vr(a,2)}, {vr(P,2)}
        v_pk_add_f32 {vr(a+2,2)}, {vr(a+2,2)}, {vr(P+2,2)}
        """)

    def pack8(dst, a0, a1):
        e(f"""
        v_cvt_pk_bf16_f32 v{dst}, v{a0}, v{a0+1}
        v_cvt_pk_bf16_f32 v{dst+1}, v{a0+2}, v{a0+3}
        v_cvt_pk_bf16_f32 v{dst+2}, v{a1}, v{a1+1}
        v_cvt_pk_bf16_f32 v{dst+3}, v{a1+2}, v{a1+3}
        """)

    loop(0)
    epi_common()
    e(f"""
    s_mov_b32 s64, {LOG2E}
    s_mov_b32 s65, {LOG2E}
    s_mov_b32 s66, {EPS}
    s_lshl_b32 s67, {sIDX}, 1
    s_add_u32 s67, s67, {sJ}
    s_lshl_b32 s5, s67, 10
    s_add_u32 s5, s5, {WS_PQ}
    """)
    P = T + 16
    for m in range(8):
        phi4(acc(0, 0, m), P); phi4(acc(0, 1, m), P + 4)
        blockbase(m, "s4", 32, "s5")
        r = tq()
        pack8(r, acc(0, 0, m), acc(0, 1, m))
        e(f"buffer_store_dwordx4 {vr(r)}, v{vL16}, {SW}, s4 offen {ST}")
    KV = acc(0, 0, 0)
    Z = KV + 16; ONES = KV + 24
    for i in range(4): e(f"v_mov_b32 v{ONES+i}, 0x3f803f80")
    for u in range(4):
        for t in range(2):
            phi4(acc(1, t, 2 * u), P); phi4(acc(1, t, 2 * u + 1), P + 4)
            pack8(acc(1, t, 2 * u), acc(1, t, 2 * u), acc(1, t, 2 * u + 1))
        for t in range(2):
            pack8(acc(2, t, 2 * u), acc(2, t, 2 * u), acc(2, t, 2 * u + 1))
        e("s_nop 1")
        for td in range(2):
            for te in range(2):
                d = vr(KV + (td * 2 + te) * 4)
                e(mfma(d, vr(acc(1, td, 2 * u)), vr(acc(2, te, 2 * u)), None if u else "0"))
            d = vr(Z + td * 4)
            e(mfma(d, vr(acc(1, td, 2 * u)), vr(ONES), None if u else "0"))
    e(f"""
    s_mul_i32 s4, {sJ}, 6144
    s_add_u32 s4, s4, {SPARE}
    v_add_u32 v{T}, s4, v{vL16}
    s_nop 7
    s_cmp_eq_u32 {sI}, 0
    s_cbranch_scc1 L1_q_rd
    """)
    for i in range(6): e(f"ds_write_b128 v{T}, {vr(KV+i*4)} offset:{i*1024}")
    e(f"""
    s_waitcnt lgkmcnt(0)
    s_barrier
    s_branch L1_gate
    L1_q_rd:
    s_barrier
    """)
    R = KV + 32
    for i in range(6): e(f"ds_read_b128 {vr(R+i*4)}, v{T} offset:{i*1024}")
    e(f"""
    s_lshl_b32 s4, s67, 3
    s_add_u32 s4, s4, {sMT}
    s_lshl_b32 s4, s4, 12
    s_add_u32 s4, s4, {WS_KVP}
    s_lshl_b32 s5, s67, 10
    s_lshl_b32 s6, {sMT}, 6
    s_add_u32 s5, s5, s6
    s_add_u32 s5, s5, {WS_ZP}
    v_and_b32 v{T+1}, 48, v{vL}
    s_waitcnt lgkmcnt(0)
    """)
    for i in range(12): e(f"v_pk_add_f32 {vr(KV+i*2,2)}, {vr(KV+i*2,2)}, {vr(R+i*2,2)}")
    for i in range(4): e(f"buffer_store_dwordx4 {vr(KV+i*4)}, v{vL16}, {SW}, s4 offen offset:{i*1024} {ST}")
    e(f"""
    s_mov_b64 s[6:7], exec
    s_mov_b32 exec_lo, 0x00010001
    s_mov_b32 exec_hi, 0x00010001
    buffer_store_dwordx4 {vr(Z)}, v{T+1}, {SW}, s5 offen {ST}
    buffer_store_dwordx4 {vr(Z+4)}, v{T+1}, {SW}, s5 offen offset:512 {ST}
    s_mov_b64 exec, s[6:7]
    s_branch L1_gate
    """)
    loop(1)
    epi_common()
    for m in range(8):
        blockbase(m, "s4", A2_KB, "s63")
        relu_store(acc(0, 0, m), acc(0, 1, m), "s4", 0)
        relu_store(acc(1, 0, m), acc(1, 1, m), "s4", 2048)
        e("s_add_u32 s5, s4, 4096")
        relu_store(acc(2, 0, m), acc(2, 1, m), "s5", 0)
    G0 = ACC + 64
    e("L1_gate:")
    stamp(e, 3, cfg)
    for i in range(32): e(f"v_accvgpr_read_b32 v{G0+i}, a{GX+i}")
    e(f"v_mov_b32 v{G0+32}, 0")
    e(f"v_mov_b32 v{G0+33}, 0")
    for i in range(16): e(f"v_dot2c_f32_bf16 v{G0+32+(i&1)}, v{G0+i}, v{G0+16+i}")
    g = G0 + 32
    e(f"""
    s_nop 2
    v_add_f32 v{g}, v{g}, v{g+1}
    s_nop 1
    v_add_f32_dpp v{g}, v{g}, v{g} quad_perm:[1,0,3,2] row_mask:0xf bank_mask:0xf
    s_nop 1
    v_add_f32_dpp v{g}, v{g}, v{g} quad_perm:[2,3,0,1] row_mask:0xf bank_mask:0xf
    s_nop 1
    v_add_f32_dpp v{g}, v{g}, v{g} row_half_mirror row_mask:0xf bank_mask:0xf
    s_nop 1
    v_add_f32_dpp v{g}, v{g}, v{g} row_mirror row_mask:0xf bank_mask:0xf
    s_nop 1
    v_add_f32_dpp v{g}, v{g}, v{g} row_bcast:15 row_mask:0xa bank_mask:0xf
    v_mul_f32 v{g}, 0xbfb8aa3b, v{g}
    v_exp_f32 v{g}, v{g}
    v_lshrrev_b32 v{g+1}, 5, v{vL}
    v_add_f32 v{g}, 1.0, v{g}
    v_rcp_f32 v{g}, v{g}
    v_lshlrev_b32 v{g+1}, 2, v{g+1}
    s_lshl_b32 s4, s2, 2
    s_add_u32 s4, s4, {sW}
    s_lshl_b32 s5, s4, 3
    s_add_u32 s5, s5, {WS_G}
    s_mov_b32 exec_lo, 0x80000000
    s_mov_b32 exec_hi, 0x80000000
    buffer_store_dword v{g}, v{g+1}, {SW}, s5 offen {ST}
    s_mov_b64 exec, 1
    v_mov_b32 v{g+2}, 0
    s_lshl_b32 s5, s2, 7
    s_lshl_b32 s6, {sW}, 2
    s_add_u32 s5, s5, s6
    s_add_u32 s6, s5, {WS_FLAG}
    s_add_u32 s5, s5, {WS_CNT}
    buffer_store_dword v{g+2}, v{g+2}, {SW}, s6 offen {ST}
    buffer_store_dword v{g+2}, v{g+2}, {SW}, s5 offen {ST}
    s_mov_b64 exec, -1
    """)
    if cfg.get("stamps"):
        stamp(e, 4, cfg)
        e("s_waitcnt vmcnt(0)")
        stamp(e, 5, cfg)
        stamp_flush(e, cfg, 8, 0, SW, "L1_st")
    e("L1_end:")
    e("s_endpgm")
    return K, e.text(), dict(vgpr=512, accum=256, sgpr=96)


class VQ:
    def __init__(self, init=()):
        self.q = list(init)
    def op(self, tag): self.q.append(tag)
    def need(self, *tags):
        last = max((i for i, t in enumerate(self.q) if t in tags), default=-1)
        n = len(self.q) - 1 - last
        self.q = self.q[last + 1:]
        assert n <= 63
        return n


def gen_k2(cfg):
    e = Em()
    K = "gm2_kernel"
    SW, SB, SO, SB2 = "s[8:11]", "s[12:15]", "s[16:19]", "s[20:23]"
    sW, sRB, sNB, sKH, sI, sJ = "s24", "s25", "s26", "s27", "s28", "s29"
    sA, sB, sLds, sLds2, sIt, sPart = "s30", "s31", "s32", "s33", "s34", "s35"
    sA2, sB2 = "s36", "s37"
    vL, vL16, vA2 = 1, 2, 3
    vB = 4
    rA, rB = 8, 10
    vFl, vOne, vZero = 14, 15, 16
    vG = 20
    T = 24
    ACC = 48
    def acc(L, t, m): return ACC + ((L * 2 + t) * 4 + m) * 4
    def afr(buf, m, ks): return buf * 32 + (m * 2 + ks) * 4
    def bfr(buf, L, t, ks): return 64 + buf * 32 + ((L * 2 + t) * 2 + ks) * 4
    SPARE = 131072

    e(f"""
    s_cmp_ge_u32 s2, 256
    s_cbranch_scc1 L2_end
    """)
    stamp(e, 0, cfg)
    e(f"""
    s_load_dwordx2 s[40:41], s[0:1], 16
    s_load_dwordx2 s[42:43], s[0:1], 40
    s_load_dwordx2 s[44:45], s[0:1], 56
    s_load_dwordx2 s[46:47], s[0:1], 72
    v_lshrrev_b32 v{T}, 6, v0
    v_and_b32 v{vL}, 63, v0
    v_readfirstlane_b32 {sW}, v{T}
    v_lshlrev_b32 v{vL16}, 4, v{vL}
    s_and_b32 s3, s2, 7
    s_lshr_b32 s4, s2, 3
    """)
    e(f"""
    s_and_b32 {sKH}, s3, 1
    s_lshr_b32 s5, s3, 1
    s_and_b32 s5, s5, 1
    s_lshl_b32 s5, s5, 3
    s_and_b32 s6, s4, 7
    s_add_u32 {sRB}, s5, s6
    s_lshr_b32 s5, s3, 2
    s_lshl_b32 s5, s5, 2
    s_lshr_b32 s6, s4, 3
    s_add_u32 {sNB}, s5, s6
    s_xor_b32 {sPart}, s2, 1
    s_lshr_b32 {sI}, {sW}, 1
    s_and_b32 {sJ}, {sW}, 1
    s_lshl_b32 {sLds}, {sW}, 12
    s_lshl_b32 {sLds2}, {sW}, 11
    v_add_u32 v{vA2}, {A2_KB*1024 - 2048}, v{vL16}
    """)
    e(f"""
    s_lshl_b32 s4, {sRB}, 3
    s_lshl_b32 s5, {sW}, 1
    s_add_u32 s4, s4, s5
    s_mul_i32 s4, s4, {A2_KB*1024}
    s_add_u32 {sA2}, s4, {112*1024}
    s_mul_i32 s5, {sKH}, {56*1024}
    s_add_u32 {sA}, s4, s5
    """)
    e(f"""
    s_mul_i32 s4, {sKH}, 1792
    s_lshl_b32 s5, {sJ}, 5
    s_add_u32 s4, s4, s5
    s_lshl_b32 s4, s4, 11
    s_xor_b32 s5, {sKH}, {sI}
    s_lshl_b32 s6, {sNB}, 1
    s_add_u32 s5, s5, s6
    s_lshl_b32 s5, s5, 7
    s_add_u32 {sB}, s4, s5
    s_add_u32 s50, s6, {sKH}
    s_lshl_b32 s50, s50, 7
    s_lshl_b32 s4, {sW}, 15
    s_add_u32 {sB2}, s4, s50
    """)
    e(f"""
    v_lshrrev_b32 v{T}, 3, v{vL}
    v_lshrrev_b32 v{T+1}, 4, v{vL}
    v_and_b32 v{T+2}, 7, v{vL}
    v_lshlrev_b32 v{T+3}, 1, v{T+1}
    v_xor_b32 v{T+3}, v{T+3}, v{T+2}
    v_lshlrev_b32 v{T+3}, 4, v{T+3}
    v_lshl_add_u32 v{vB}, v{T}, 11, v{T+3}
    v_add_u32 v{vB+1}, {16384-1024}, v{vB}
    v_add_u32 v{vB+2}, {2*(16384-1024)}, v{vB}
    v_add_u32 v{vB+3}, {3*(16384-1024)}, v{vB}
    s_waitcnt lgkmcnt(0)
    s_mov_b32 s8, s46
    s_mov_b32 s9, s47
    s_mov_b32 s10, {WS_SIZE}
    s_mov_b32 s11, 0x20000
    s_mov_b32 s12, s42
    s_mov_b32 s13, s43
    s_mov_b32 s14, {3584*2048}
    s_mov_b32 s15, 0x20000
    s_mov_b32 s16, s44
    s_mov_b32 s17, s45
    s_mov_b32 s18, {2048*2048}
    s_mov_b32 s19, 0x20000
    s_mov_b32 s20, s40
    s_mov_b32 s21, s41
    s_mov_b32 s22, {1024*2048}
    s_mov_b32 s23, 0x20000
    """)
    vq = VQ()
    KP = 176
    ZPv = 208; PQv = 216
    e(f"""
    s_and_b32 s51, s2, 7
    s_lshr_b32 s52, s2, 3
    s_lshl_b32 s4, s52, 15
    s_lshl_b32 s5, {sW}, 10
    s_add_u32 s4, s4, s5
    s_add_u32 s4, s4, {WS_KVP}
    """)
    for p in range(8):
        e(f"buffer_load_dwordx4 {vr(KP+p*4)}, v{vL16}, {SW}, s4 offen")
        vq.op("o")
        if p < 7: e("s_add_u32 s4, s4, 4096")
    e(f"""
    v_lshlrev_b32 v{T+4}, 6, v{T+2}
    v_lshl_add_u32 v{T+4}, v{T+1}, 4, v{T+4}
    s_lshl_b32 s4, s52, 10
    s_add_u32 s4, s4, {WS_ZP}
    buffer_load_dwordx4 {vr(ZPv)}, v{T+4}, {SW}, s4 offen
    buffer_load_dwordx4 {vr(ZPv+4)}, v{T+4}, {SW}, s4 offen offset:512
    s_lshl_b32 s53, s51, 4
    s_lshl_b32 s5, {sW}, 2
    s_add_u32 s53, s53, s5
    s_lshl_b32 s4, s53, 5
    s_add_u32 s4, s4, s52
    s_lshl_b32 s4, s4, 10
    s_add_u32 s4, s4, {WS_PQ}
    """)
    vq.op("o"); vq.op("o")
    for m in range(4):
        e(f"buffer_load_dwordx4 {vr(PQv+m*4)}, v{vL16}, {SW}, s4 offen")
        vq.op("o")
        if m < 3: e("s_add_u32 s4, s4, 32768")

    def dmaA(ring, ph):
        s = sA if ph == 1 else sA2
        fl = "" if ph == 1 else "sc1 "
        r = [f"s_add_u32 m0, {sLds}, {ring*32768}"]
        r += [f"buffer_load_dwordx4 v{vL16 if q < 2 else vA2}, {SW}, {s} offen offset:{q*1024} {fl}lds" for q in range(4)]
        r += [f"s_add_u32 {s}, {s}, 2048"]
        return r

    def dmaB(ring, ph):
        if ph == 1:
            r = [f"s_add_u32 m0, {sLds}, {ring*32768 + 16384}"]
            r += [f"buffer_load_dwordx4 v{vB+q}, {SB}, {sB} offen offset:{q*1024} lds" for q in range(4)]
            r += [f"s_add_u32 {sB}, {sB}, {64*2048}"]
        else:
            r = [f"s_add_u32 m0, {sLds2}, {ring*32768 + 16384}"]
            r += [f"buffer_load_dwordx4 v{vB+q}, {SB2}, {sB2} offen offset:{q*1024} lds" for q in range(2)]
            r += [f"s_add_u32 {sB2}, {sB2}, {64*2048}"]
        return r

    for t in range(4):
        for g in (dmaB(t, 1), dmaA(t, 1)):
            e(g[0]); e("s_nop 0")
            for x in g[1:]:
                e(x)
                if x.startswith("buffer"): vq.op(("s", t))
    e(f"""
    v_and_b32 v{T+5}, 15, v{vL}
    v_lshlrev_b32 v{T+6}, 2, v{T+5}
    s_lshl_b32 s4, {sRB}, 9
    s_lshl_b32 s5, {sI}, 8
    s_add_u32 s4, s4, s5
    s_add_u32 s4, s4, {WS_G}
    """)
    for m in range(4):
        e(f"buffer_load_dword v{vG+m}, v{T+6}, {SW}, s4 offen offset:{m*64}")
        vq.op("g")
    e(f"""
    s_lshl_b32 s4, {sI}, 13
    v_add_u32 v{rA}, s4, v{vL16}
    v_add_u32 v{rA+1}, 0x10000, v{rA}
    v_lshrrev_b32 v{T+3}, 2, v{vL}
    v_lshlrev_b32 v{T+3}, 7, v{T+3}
    v_bfe_u32 v{T+4}, v{vL}, 3, 2
    s_lshl_b32 s4, {sJ}, 1
    v_xor_b32 v{T+4}, s4, v{T+4}
    v_lshl_add_u32 v{T+3}, v{T+4}, 5, v{T+3}
    v_and_b32 v{T+4}, 3, v{vL}
    v_lshl_add_u32 v{T+3}, v{T+4}, 3, v{T+3}
    v_add_u32 v{rB}, 16384, v{T+3}
    v_xor_b32 v{rB+1}, 32, v{rB}
    v_add_u32 v{rB+2}, 0x10000, v{rB}
    v_add_u32 v{rB+3}, 0x10000, v{rB+1}
    v_mov_b32 v{vOne}, 1
    v_mov_b32 v{vZero}, 0
    """)
    for i in range(96): e(f"v_mov_b32 v{ACC+i}, 0")
    e(f"s_waitcnt vmcnt({vq.need('o')})")
    stamp(e, 1, cfg)
    for stp in (4, 2, 1):
        for p in range(stp):
            for h in range(2):
                a = KP + p * 4 + h * 2
                e(f"v_pk_add_f32 {vr(a,2)}, {vr(a,2)}, {vr(a+stp*4,2)}")
    e(f"""
    v_cvt_pk_bf16_f32 v{KP}, v{KP}, v{KP+1}
    v_cvt_pk_bf16_f32 v{KP+1}, v{KP+2}, v{KP+3}
    s_lshl_b32 s4, {sJ}, 10
    s_lshl_b32 s5, {sI}, 3
    s_add_u32 s4, s4, s5
    s_add_u32 s4, s4, {SPARE}
    v_add_u32 v{T}, s4, v{vL16}
    v_add_u32 v{T+1}, {SPARE}, v{vL16}
    ds_write_b64 v{T}, {vr(KP,2)}
    """)
    for dpp in ("quad_perm:[1,0,3,2]", "quad_perm:[2,3,0,1]", "row_half_mirror"):
        for i in range(8):
            e(f"v_add_f32_dpp v{ZPv+i}, v{ZPv+i}, v{ZPv+i} {dpp} row_mask:0xf bank_mask:0xf")
    for i in range(4):
        e(f"v_cvt_pk_bf16_f32 v{ZPv+i}, v{ZPv+2*i}, v{ZPv+2*i+1}")
    e(f"""
    s_waitcnt vmcnt({vq.need(('s',0))}) lgkmcnt(0)
    s_barrier
    ds_read_b128 {vr(KP+4)}, v{T+1}
    ds_read_b128 {vr(KP+8)}, v{T+1} offset:1024
    """)

    def rdA(ring, buf):
        return [f"ds_read_b128 {ar(afr(buf, m, ks))}, v{rA+(ring>>1)} offset:{(ring&1)*32768 + m*2048 + ks*1024}"
                for m in range(4) for ks in range(2)]

    def rdB(ring, buf, ph):
        return [f"ds_read_b64_tr_b16 {ar(bfr(buf, L, t, ks)+hf*2, 2)}, v{rB+t+2*(ring>>1)} offset:{(ring&1)*32768 + L*8192 + ks*4096 + hf*2048}"
                for L in range(2 if ph == 1 else 1) for t in range(2) for ks in range(2) for hf in range(2)]

    rd0 = rdA(0, 0) + rdB(0, 0, 1)
    for x in rd0[:12]: e(x)
    e("s_waitcnt lgkmcnt(12)")
    O = 144
    DEN = KP + 12
    for m in range(4):
        e(mfma(vr(DEN + m * 4), vr(ZPv), vr(PQv + m * 4), "0"))
        e(mfma(vr(O + m * 8), vr(KP + 4), vr(PQv + m * 4), "0"))
        e(mfma(vr(O + m * 8 + 4), vr(KP + 8), vr(PQv + m * 4), "0"))
    for x in rd0[12:]: e(x)
    e(f"""
    s_mul_i32 s4, s53, {A2_KB*1024}
    s_add_u32 s5, s52, 112
    s_lshl_b32 s5, s5, 10
    s_add_u32 s4, s4, s5
    """)
    for m in range(4):
        e(f"v_add_f32 v{DEN+m*4}, {EPS:#x}, v{DEN+m*4}")
    for m in range(4):
        e(f"v_rcp_f32 v{DEN+m*4}, v{DEN+m*4}")
    for m in range(4):
        for h in range(4):
            a = O + m * 8 + h * 2
            e(f"v_pk_mul_f32 {vr(a,2)}, {vr(a,2)}, {vr(DEN+m*4,2)} op_sel_hi:[1,0]")
        for h in range(4):
            e(f"v_cvt_pk_bf16_f32 v{PQv+m*4+h}, v{O+m*8+h*2}, v{O+m*8+h*2+1}")
        e(f"buffer_store_dwordx4 {vr(PQv+m*4)}, v{vL16}, {SW}, s4 offen sc1")
        vq.op("ost")
        if m < 3: e(f"s_add_u32 s4, s4, {A2_KB*1024}")
    e(f"""
    s_mov_b32 {sIt}, 0
    s_lshl_b32 s54, s51, 7
    s_add_u32 s54, s54, {WS_CNT}
    s_lshr_b32 s55, {sRB}, 1
    s_lshl_b32 s55, s55, 7
    s_add_u32 s55, s55, {WS_CNT}
    s_lshl_b32 s4, {sW}, 2
    s_lshl_b32 s56, s2, 7
    s_add_u32 s56, s56, s4
    s_add_u32 s56, s56, {WS_FLAG}
    s_lshl_b32 s57, {sPart}, 7
    s_add_u32 s57, s57, s4
    s_add_u32 s57, s57, {WS_FLAG}
    s_lshl_b32 s4, {sW}, 13
    s_lshl_b32 s58, s2, 15
    s_add_u32 s58, s58, s4
    s_add_u32 s58, s58, {WS_XCH}
    s_lshl_b32 s59, {sPart}, 15
    s_add_u32 s59, s59, s4
    s_add_u32 s59, s59, {WS_XCH}
    s_waitcnt vmcnt({vq.need(('s',1))}) lgkmcnt(0)
    s_barrier
    """)
    stamp(e, 2, cfg)

    def step(s, vq, extra=(), tail=(), fixedN=None):
        ph = 1 if s < 28 else 2
        buf = s & 1
        mf = []
        for L in range(2 if ph == 1 else 1):
            for t in range(2):
                for m in range(4):
                    for ks in range(2):
                        mf.append(mfma(vr(acc(L if ph == 1 else 2, t, m)), ar(bfr(buf, L, t, ks)), ar(afr(buf, m, ks))))
        N = len(mf)
        it = []
        vm = []
        dpos = []
        if s + 4 < 44:
            dph = 1 if s + 4 < 28 else 2
            gB, gA = dmaB(s & 3, dph), dmaA(s & 3, dph)
            nd = len(gB) + len(gA) - 4
            dpos = [1 + (d * (N - 1)) // nd for d in range(nd)]
            k = 0
            for g in (gB, gA):
                it.append((dpos[k] - 1, g[0]))
                for x in g[1:-1]:
                    it.append((dpos[k], x)); k += 1
                it.append((min(N - 1, dpos[k - 1] + 1), g[-1]))
        if s + 1 < 44:
            rph = 1 if s + 1 < 28 else 2
            ra, rb = rdA((s + 1) & 3, 1 - buf), rdB((s + 1) & 3, 1 - buf, rph)
            rd = []
            k = 0
            for i in range(len(ra)):
                n = (len(rb) * (i + 1)) // len(ra)
                rd += rb[k:n]; k = n
                rd.append(ra[i])
            hi = N - 4 if ph == 1 else N - 2
            free = [p for p in range(0, hi) if p not in dpos]
            for i, x in enumerate(rd): it.append((free[(i * len(free)) // len(rd)], x))
        it += list(extra)
        body = place(mf, it)
        for x in body:
            tag = None
            if isinstance(x, tuple): x, tag = x
            e(x)
            if x.startswith("buffer"):
                vq.op(tag if tag else ("s", s + 4))
        if s + 1 < 44:
            if s + 2 < 44:
                n = vq.need(("s", s + 2))
                if fixedN is not None:
                    assert n >= fixedN, (s, n)
                    n = fixedN
                e(f"s_waitcnt vmcnt({n}) lgkmcnt(0)")
                e("s_barrier")
            else:
                e("s_waitcnt lgkmcnt(0)")
        for x in tail: e(x)

    e(".p2align 3")
    e("L2_loop:")
    for s in range(4):
        tail = []
        ex = []
        if s == 3:
            tail = [f"s_add_u32 s4, {sIt}, {sW}", "s_cmp_eq_u32 s4, 0", "s_cbranch_scc0 L2_nosig",
                    "s_mov_b64 exec, 1", f"buffer_atomic_add v{vOne}, off, {SW}, s54", "s_mov_b64 exec, -1", "L2_nosig:",
                    f"s_add_u32 {sIt}, {sIt}, 1", f"s_cmp_lt_u32 {sIt}, 6", "s_cbranch_scc1 L2_loop"]
        if s == 0:
            ex = [(0, (f"buffer_load_dword v{vFl}, off, {SW}, s55 sc1", "cnt"))]
        step(s, vq, ex, tail, fixedN=16)
    assert "ost" not in vq.q and "cnt" not in vq.q
    vq = VQ([("s", 26)] * 8 + [("s", 27)] * 8)
    stamp(e, 3, cfg)
    e(f"""
    v_readfirstlane_b32 s4, v{vFl}
    s_nop 0
    s_cmp_ge_u32 s4, 32
    s_cbranch_scc1 L2_oready
    s_mov_b32 s5, 0
    L2_ospin:
    s_add_u32 s5, s5, 1
    s_cmp_gt_u32 s5, 0x40000
    s_cbranch_scc1 L2_oready
    s_sleep 2
    buffer_load_dword v{vFl}, off, {SW}, s55 sc1
    s_waitcnt vmcnt(0)
    v_readfirstlane_b32 s4, v{vFl}
    s_nop 0
    s_cmp_ge_u32 s4, 32
    s_cbranch_scc0 L2_ospin
    L2_oready:
    """)
    FS, FP, FC = cfg.get("fs", 31), cfg.get("fp", 35), cfg.get("fc", 38)
    for s in range(24, 44):
        ex = []; tail = []
        if s in (28, 29):
            t = s - 28
            for m in range(4):
                ex.append((8 + 2 * m if s == 28 else 2 + 3 * m,
                           (f"buffer_store_dwordx4 {vr(acc(1, t, m))}, v{vL16}, {SW}, s58 offen offset:{m*1024} sc1", "xst")))
            if s == 28: tail = ["s_add_u32 s58, s58, 4096"]
        if s == 28: stamp(e, 4, cfg)
        if s == FS + 1:
            assert "xst" not in vq.q
            ex += [(0, ["s_mov_b64 exec, 1", (f"buffer_store_dword v{vOne}, off, {SW}, s56 sc1", "fl"), "s_mov_b64 exec, -1", "s_nop 3"])]
        if s == FP:
            ex += [(0, (f"buffer_load_dword v{vFl}, off, {SW}, s57 sc1", "pf"))]
        if s == FC:
            assert "pf" not in vq.q
            e(f"""
            v_readfirstlane_b32 s4, v{vFl}
            s_nop 0
            s_cmp_eq_u32 s4, 1
            s_cbranch_scc1 L2_pready
            s_mov_b32 s5, 0
            L2_pspin:
            s_add_u32 s5, s5, 1
            s_cmp_gt_u32 s5, 0x40000
            s_cbranch_scc1 L2_pready
            s_sleep 1
            buffer_load_dword v{vFl}, off, {SW}, s57 sc1
            s_waitcnt vmcnt(0)
            v_readfirstlane_b32 s4, v{vFl}
            s_nop 0
            s_cmp_eq_u32 s4, 1
            s_cbranch_scc0 L2_pspin
            L2_pready:
            """)
        if s in (FC, FC + 1):
            t = s - FC
            for m in range(4):
                ex.append((2 + 3 * m, (f"buffer_load_dwordx4 {vr(acc(3, t, m))}, v{vL16}, {SW}, s59 offen offset:{m*1024} sc1", "rx")))
            if s == FC: tail = ["s_add_u32 s59, s59, 4096"]
        step(s, vq, ex, tail)
    stamp(e, 5, cfg)
    e(f"""
    v_and_b32 v{T}, 15, v{vL}
    v_bfe_u32 v{T+1}, v{vL}, 4, 1
    v_lshrrev_b32 v{T+2}, 5, v{vL}
    v_lshlrev_b32 v{T}, 11, v{T}
    v_lshl_add_u32 v{T}, v{T+1}, 5, v{T}
    v_lshl_add_u32 v{T}, v{T+2}, 4, v{T}
    s_lshl_b32 s4, {sRB}, 18
    s_lshl_b32 s5, {sI}, 17
    s_add_u32 s4, s4, s5
    s_lshl_b32 s5, {sJ}, 6
    s_add_u32 s4, s4, s5
    s_add_u32 s4, s4, s50
    s_waitcnt vmcnt(0)
    """)
    for m in range(4):
        gg = T + 4; og = T + 6
        e(f"v_mov_b32 v{gg}, v{vG+m}")
        e(f"v_sub_f32 v{og}, 1.0, v{vG+m}")
        for t in range(2):
            for h in range(2):
                b = acc(0, t, m) + 2 * h; r = acc(3, t, m) + 2 * h; a = acc(2, t, m) + 2 * h
                e(f"v_pk_add_f32 {vr(b,2)}, {vr(b,2)}, {vr(r,2)}")
                e(f"v_pk_mul_f32 {vr(b,2)}, {vr(b,2)}, {vr(og,2)} op_sel_hi:[1,0]")
                e(f"v_pk_fma_f32 {vr(b,2)}, {vr(a,2)}, {vr(gg,2)}, {vr(b,2)} op_sel_hi:[1,0,1]")
        r = T + 8 + 4 * m
        for t in range(2):
            for h in range(2):
                e(f"v_cvt_pk_bf16_f32 v{r+2*t+h}, v{acc(0,t,m)+2*h}, v{acc(0,t,m)+2*h+1}")
        e(f"""
        s_nop 1
        v_permlane16_swap_b32 v{r}, v{r+2}
        v_permlane16_swap_b32 v{r+1}, v{r+3}
        buffer_store_dwordx4 {vr(r)}, v{T}, {SO}, s4 offen
        """)
        if m < 3: e(f"s_add_u32 s4, s4, {16*2048}")
    if cfg.get("stamps"):
        stamp(e, 6, cfg)
        e("s_waitcnt vmcnt(0)")
        stamp(e, 7, cfg)
        stamp_flush(e, cfg, 8, 1, SW, "L2_st")
    e("L2_end:")
    e("s_endpgm")
    return K, e.text(), dict(vgpr=384, accum=256, sgpr=96)


HEAD = """; Kernarg layout for this problem (80 bytes, ptrs only, base s[0:1]):
"""


def build(cfg=None):
    cfg = cfg or {}
    ks = [gen_k1(cfg), gen_k2(cfg)]
    s = HEAD
    for k, _, _ in ks:
        s += f"; @launch kernel={k} grid=(256,1,1) block=(256,1,1) lds=163840\n"
    s += '.amdgcn_target "amdgcn-amd-amdhsa--gfx950"\n.text\n'
    for k, body, d in ks:
        s += f".globl {k}\n.p2align 8\n.type {k},@function\n{k}:\n" + body
    s += '.section .rodata,"a"\n'
    for k, body, d in ks:
        s += f""".p2align 6
.amdhsa_kernel {k}
  .amdhsa_next_free_vgpr {d['vgpr']}
  .amdhsa_next_free_sgpr {d['sgpr']}
  .amdhsa_accum_offset {d['accum']}
  .amdhsa_group_segment_fixed_size 0
  .amdhsa_kernarg_size 80
  .amdhsa_user_sgpr_count 2
  .amdhsa_user_sgpr_kernarg_segment_ptr 1
  .amdhsa_system_sgpr_workgroup_id_x 1
  .amdhsa_float_denorm_mode_32 3
.end_amdhsa_kernel
"""
    return s


if __name__ == "__main__":
    out = sys.argv[1] if len(sys.argv) > 1 else f"cdna_kernels/{NAME}.s"
    cfg = {}
    for a in sys.argv[2:]:
        k, v = a.split("=")
        cfg[k] = int(v) if v.lstrip("-").isdigit() else v
    open(out, "w").write(build(cfg))
    print("wrote", out)
```

```python
import sys

NAME = "gated_mix__linear_attn_block__dense_activation_relu__prompt"

A2_KB = 144
WS_A2 = 0
WS_PQ = 0x1200000
WS_KVP = 0x1600000
WS_ZP = 0x1700000
WS_G = 0x1710000
WS_FLAG = 0x1720000
WS_CNT = 0x1730000
WS_STAMP = 0x1740000
WS_XCH = 0x1800000
WS_SIZE = 0x2000000

LOG2E = 0x3fb8aa3b
EPS = 0x358637bd


class Em:
    def __init__(self):
        self.l = []

    def __call__(self, s):
        for x in s.strip("\n").split("\n"):
            x = x.strip()
            if x:
                self.l.append(x if x.endswith(":") else "  " + x)

    def text(self):
        return "\n".join(self.l) + "\n"


def place(mf, items):
    by = {}
    for p, ins in items:
        by.setdefault(p, []).extend(ins if isinstance(ins, list) else [ins])
    out = list(by.get(-1, []))
    for i, x in enumerate(mf):
        out.append(x)
        out += by.get(i, [])
    assert all(-1 <= p < len(mf) for p in by), (sorted(by), len(mf))
    return out


def vr(b, n=4, c="v"):
    return f"{c}[{b}:{b+n-1}]" if n > 1 else f"{c}{b}"


def ar(b, n=4):
    return vr(b, n, "a")


def mfma(d, a, b, c=None):
    return f"v_mfma_f32_16x16x32_bf16 {d}, {a}, {b}, {d if c is None else c}"


def spread(n, lo, hi, avoid=()):
    free = [p for p in range(lo, hi) if p not in avoid]
    return [free[(i * len(free)) // n] for i in range(n)]


def stamp(e, idx, cfg, mode=1):
    if cfg.get("stamps") and (cfg.get("smode", 1) == mode or idx == 0):
        e(f"s_memrealtime s[{70+2*idx}:{71+2*idx}]")


def stamp_flush(e, cfg, nst, kidx, srd, lab):
    if not cfg.get("stamps"):
        return
    e("s_waitcnt lgkmcnt(0)")
    for i in range(nst):
        e(f"v_mov_b32 v{2+i}, s{70+2*i}")
    e(f"""
    s_lshl_b32 s3, s2, 6
    s_add_u32 s3, s3, {WS_STAMP + kidx*16384}
    v_mov_b32 v1, 0
    v_cmp_eq_u32 vcc, 0, v0
    s_and_saveexec_b64 s[68:69], vcc
    s_cbranch_execz {lab}
    buffer_store_dwordx4 v[2:5], v1, {srd}, s3 offen
    buffer_store_dwordx4 v[6:9], v1, {srd}, s3 offen offset:16
    {lab}:
    s_mov_b64 exec, s[68:69]
    """)


def gen_k1(cfg):
    e = Em()
    K = "gm1_kernel"
    ST = cfg.get("st1", "sc1")
    SA, SB0, SB1, SW = "s[8:11]", "s[12:15]", "s[16:19]", "s[20:23]"
    sW, sMT, sTYPE, sIDX, sSH, sQD = "s24", "s25", "s26", "s27", "s28", "s29"
    sAlo, sAhi, sB0, sB1, sB0st, sB1st, sLds, sIt = "s30", "s31", "s32", "s33", "s34", "s35", "s36", "s37"
    sI, sJ = "s38", "s39"
    vL, vL16 = 1, 2
    vA, vB0, vB1 = 4, 8, 12
    rA, rB = 16, 20
    T = 24
    ACC = 48
    def acc(L, t, m):
        if L == 3:
            return ACC + 192 + (t * 2 + m) * 4
        return ACC + ((L * 2 + t) * 8 + m) * 4
    def afr(buf, m, ks): return buf * 64 + (m * 2 + ks) * 4
    def bfr(L, t, ks): return 128 + ((L * 2 + t) * 2 + ks) * 4
    GX = 192

    SPARE = 131072
    PF = cfg.get("pf", 4)
    LEAD = cfg.get("lead", 3)
    W2 = cfg.get("w2mode", 2)
    W2M = {1: (0x60, 0x60), 2: (0x60, 0), 3: (0x40, 0x40)}[W2]
    XT = 1 if PF == 4 else 0
    sCe = "s87"
    SP, sP, sPst, vP, vD = "s[88:91]", "s92", "s93", 3, 224
    sCls, sPn = "s99", "s98"
    def lines(txt): return [x.strip() for x in txt.strip().split("\n") if x.strip()]

    def dmaA(ldsoff, sreg):
        r = [f"s_add_u32 m0, {sLds}, {ldsoff}"]
        r += [f"buffer_load_dwordx4 v{vA+q}, {SA}, {sreg} offen offset:{q*1024} {cfg.get('pa1','')} lds" for q in range(4)]
        r += [f"s_add_u32 {sreg}, {sreg}, 128"]
        return r

    def dmaB(ldsoff, odd):
        srd, vb, sreg, sst = (SB1, vB1, sB1, sB1st) if odd else (SB0, vB0, sB0, sB0st)
        r = [f"s_add_u32 m0, {sLds}, {ldsoff}"]
        r += [f"buffer_load_dwordx4 v{vb+q}, {srd}, {sreg} offen offset:{q*1024} {cfg.get('pb1','')} lds" for q in range(4)]
        r += [f"s_add_u32 {sreg}, {sreg}, {sst}"]
        return r

    def burst(g):
        e(g[0]); e("s_nop 0")
        for x in g[1:]: e(x)

    def mix(main, fill):
        for i in range(len(main)):
            e(main[i])
            for x in fill[(i * len(fill)) // len(main):((i + 1) * len(fill)) // len(main)]: e(x)

    touch = f"buffer_load_dword a{vD}, v{vP}, {SP}, {sP} offen"
    tadv = f"s_add_u32 {sP}, {sP}, {sPst}"

    T0 = cfg.get("t0", 2)
    def pfsetup():
        e(f"""
        s_bfe_u32 {sCls}, s2, 0x20003
        s_mov_b32 s91, 0x20000
        v_lshlrev_b32 v{vP}, 7, v{vL}
        v_mov_b32 v{T+6}, 0x40000000
        s_cmp_eq_u32 {sI}, 0
        s_cbranch_scc1 L1_pfa
        s_lshl_b32 s5, {sJ}, 1
        s_xor_b32 {sCls}, {sCls}, s5
        s_mov_b32 s88, s46
        s_mov_b32 s89, s47
        s_mov_b32 s90, {3584*2048}
        s_mov_b32 {sPst}, 7168
        s_lshl_b32 s5, s2, 1
        s_add_u32 s5, s5, {sJ}
        s_mul_i32 {sP}, s5, {2*7168}
        s_cmp_eq_u32 {sJ}, 0
        s_mov_b32 {sPn}, {W2M[1]}
        s_cmov_b32 {sPn}, {W2M[0]}
        v_cmp_le_u32 vcc, {sPst}, v{vP}
        s_branch L1_pfd
        L1_pfa:
        s_mov_b32 {sPn}, 31
        s_cmp_eq_u32 {sJ}, 0
        s_cbranch_scc0 L1_pfx
        s_bitcmp0_b32 s2, 0
        s_cselect_b32 s88, s42, s44
        s_cselect_b32 s89, s43, s45
        s_mov_b32 s5, 7168
        s_cmov_b32 s5, 6144
        s_lshl_b32 s90, s5, 10
        s_lshl_b32 {sPst}, s5, 7
        s_lshr_b32 s6, s2, 1
        s_mul_i32 {sP}, s6, s5
        {'' if T0 else tadv}
        v_cmp_le_u32 vcc, s5, v{vP}
        s_branch L1_pfd
        L1_pfx:
        s_mov_b32 s88, s40
        s_mov_b32 s89, s41
        s_mov_b32 s90, {2048*2048}
        s_mov_b32 {sPst}, 256
        s_lshl_b32 {sP}, s2, 14
        s_add_u32 {sP}, {sP}, {128 if T0 else 384}
        v_lshrrev_b32 v{vP}, 1, v{vL}
        v_lshlrev_b32 v{vP}, 11, v{vP}
        v_and_b32 v{T+5}, 1, v{vL}
        v_cmp_lt_u32 vcc, 15, v{vL}
        v_lshl_add_u32 v{vP}, v{T+5}, 7, v{vP}
        L1_pfd:
        s_nop 1
        v_cndmask_b32 v{vP}, v{vP}, v{T+6}, vcc
        """)
    def tpro(n):
        e(f"""
        s_cmp_eq_u32 {sI}, 0
        s_cbranch_scc0 L1_tp{n}
        {touch}
        {tadv}
        L1_tp{n}:
        """)
    e(f"""
    s_cmp_ge_u32 s2, 256
    s_cbranch_scc1 L1_end
    """)
    stamp(e, 0, cfg)
    e(f"""
    s_load_dwordx4 s[40:43], s[0:1], 0
    s_load_dwordx4 s[44:47], s[0:1], 32
    s_load_dwordx2 s[48:49], s[0:1], 72
    s_load_dwordx2 s[94:95], s[0:1], 48
    s_load_dwordx2 s[96:97], s[0:1], 16
    v_lshrrev_b32 v3, 6, v0
    v_and_b32 v{vL}, 63, v0
    v_readfirstlane_b32 {sW}, v3
    v_lshrrev_b32 v{T}, 3, v{vL}
    v_lshrrev_b32 v{T+1}, 4, v{vL}
    v_and_b32 v{T+2}, 7, v{vL}
    v_xor_b32 v{T+3}, v{T+2}, v{T+1}
    v_lshlrev_b32 v{T+4}, 11, v{T}
    v_lshl_add_u32 v{vA}, v{T+3}, 4, v{T+4}
    v_xor_b32 v{vA+1}, 64, v{vA}
    v_add_u32 v{vA+2}, {2*16384 - 2048}, v{vA}
    v_add_u32 v{vA+1}, {16384 - 1024}, v{vA+1}
    v_add_u32 v{vA+3}, {2*16384 - 2048}, v{vA+1}
    s_and_b32 s5, s2, 1
    s_lshl_b32 s5, s5, 2
    s_bfe_u32 s6, s2, 0x20003
    s_add_u32 {sMT}, s5, s6
    s_bfe_u32 {sQD}, s2, 0x20005
    s_lshr_b32 {sI}, {sW}, 1
    s_and_b32 {sJ}, {sW}, 1
    s_lshl_b32 {sLds}, {sW}, 12
    s_xor_b32 s4, {sJ}, {sQD}
    s_lshl_b32 s4, s4, 5
    s_lshl_b32 s5, {sMT}, 8
    s_lshl_b32 s6, {sI}, 7
    s_add_u32 s5, s5, s6
    s_add_u32 s6, s5, s4
    s_lshl_b32 {sAlo}, s6, 11
    s_xor_b32 {sAhi}, {sAlo}, {64 << 11}
    s_mov_b32 s10, {2048*2048}
    s_mov_b32 s11, 0x20000
    s_waitcnt lgkmcnt(0)
    s_mov_b32 s8, s40
    s_mov_b32 s9, s41
    """)
    stamp(e, 1, cfg, 2)
    if PF == 4 and T0 == 1:
        pfsetup(); tpro(0)
    burst(dmaA(SPARE, sAlo))
    if PF == 4 and T0 == 2:
        pfsetup(); tpro(0)
    burst(dmaA(0, sAhi))
    e(f"""
    s_bfe_u32 s3, s2, 0x20001
    s_bfe_u32 {sTYPE}, s2, 0x10005
    s_lshr_b32 s5, s2, 6
    s_lshl_b32 s6, s3, 2
    s_add_u32 {sIDX}, s5, s6
    s_lshr_b32 {sSH}, {sIDX}, 1
    s_mul_i32 s50, {sSH}, 7
    s_and_b32 s51, {sIDX}, 1
    s_mul_i32 s51, s51, 3
    s_add_u32 s51, s51, s50
    s_add_u32 s50, s50, 6
    v_and_b32 v{T+3}, 1, v{T+1}
    v_lshlrev_b32 v{T+3}, 1, v{T+3}
    v_xor_b32 v{T+3}, v{T+3}, v{T+2}
    v_lshlrev_b32 v{T+3}, 4, v{T+3}
    v_xor_b32 v{T+4}, 64, v{T+3}
    s_cmp_eq_u32 {sTYPE}, 0
    s_cselect_b32 s52, {sIDX}, s51
    s_cselect_b32 s53, 16, 1
    s_cselect_b32 s16, s42, s44
    s_cselect_b32 s17, s43, s45
    s_mov_b32 s54, 7168
    s_cmov_b32 s54, 6144
    s_cmp_eq_u32 {sI}, 0
    s_cselect_b32 s4, s50, s52
    s_cselect_b32 s55, 7168, s54
    s_cselect_b32 s12, s44, s16
    s_cselect_b32 s13, s45, s17
    s_lshl_b32 s14, s55, 10
    s_mov_b32 s15, 0x20000
    s_lshl_b32 s7, {sJ}, 5
    s_lshl_b32 s4, s4, 7
    s_mul_i32 s6, s7, s55
    s_add_u32 {sB0}, s4, s6
    s_lshl_b32 {sB0st}, s55, 6
    """)
    def bvoff(vb, sp):
        e(f"""
        s_lshl_b32 s4, {sp}, 3
        s_sub_u32 s4, s4, 1024
        s_lshl_b32 s5, s4, 1
        v_mul_lo_u32 v{T+5}, v{T}, {sp}
        v_add_u32 v{vb}, v{T+5}, v{T+3}
        v_add3_u32 v{vb+1}, v{T+5}, v{T+4}, s4
        v_add_u32 v{vb+2}, s5, v{vb}
        v_add_u32 v{vb+3}, s5, v{vb+1}
        """)
    bvoff(vB0, "s55")
    burst(dmaB(16384, 0))
    e(f"""
    s_add_u32 s4, {sI}, 1
    s_mul_i32 s4, s4, s53
    s_add_u32 s4, s4, s52
    s_lshl_b32 s4, s4, 7
    s_mul_i32 s6, s7, s54
    s_add_u32 {sB1}, s4, s6
    s_lshl_b32 {sB1st}, s54, 6
    s_lshl_b32 s18, s54, 10
    s_mov_b32 s19, 0x20000
    """)
    bvoff(vB1, "s54")
    e(f"""
    v_lshlrev_b32 v{vL16}, 4, v{vL}
    v_and_b32 v{T}, 15, v{vL}
    v_lshrrev_b32 v{T+3}, 1, v{T}
    v_xor_b32 v{T+3}, v{T+3}, v{T+1}
    v_lshlrev_b32 v{T+3}, 4, v{T+3}
    v_lshl_add_u32 v{T+3}, v{T}, 7, v{T+3}
    s_lshl_b32 s4, {sI}, 13
    v_add_u32 v{rA}, s4, v{T+3}
    v_xor_b32 v{rA+1}, 64, v{rA}
    v_add_u32 v{rA+2}, 0x10000, v{rA}
    v_add_u32 v{rA+3}, 0x10000, v{rA+1}
    v_bfe_u32 v{T}, v{vL}, 2, 2
    v_lshl_add_u32 v{T+3}, v{T+1}, 3, v{T}
    v_lshlrev_b32 v{T+3}, 7, v{T+3}
    v_bfe_u32 v{T+4}, v{vL}, 3, 2
    s_lshl_b32 s4, {sJ}, 1
    v_xor_b32 v{T+4}, s4, v{T+4}
    v_lshl_add_u32 v{T+3}, v{T+4}, 5, v{T+3}
    v_and_b32 v{T+4}, 3, v{vL}
    v_lshl_add_u32 v{T+3}, v{T+4}, 3, v{T+3}
    v_add_u32 v{rB}, 16384, v{T+3}
    v_xor_b32 v{rB+1}, 32, v{rB}
    v_add_u32 v{rB+2}, 0x10000, v{rB}
    v_add_u32 v{rB+3}, 0x10000, v{rB+1}
    s_mov_b32 s20, s48
    s_mov_b32 s21, s49
    s_mov_b32 s22, {WS_SIZE}
    s_mov_b32 s23, 0x20000
    """)
    if PF == 4 and not T0: pfsetup()
    stamp(e, 2, cfg, 2)
    mix(dmaB(32768 + 16384, 1) + dmaA(32768, sAlo), [f"v_mov_b32 v{ACC+i}, 0" for i in range(208)])
    if PF == 4: tpro(1)

    def rdA(ring, buf, half):
        r = []
        for mm in range(4):
            for ks in range(2):
                r.append(f"ds_read_b128 {ar(afr(buf, half*4+mm, ks))}, v{rA+ks+2*(ring>>1)} offset:{(ring&1)*32768 + mm*2048}")
        return r

    def rdB(ring, odd):
        r = []
        for li, L in enumerate((1, 2) if odd else (3, 0)):
            for t in range(2):
                for ks in range(2):
                    for hf in range(2):
                        r.append(f"ds_read_b64_tr_b16 {ar(bfr(L, t, ks)+hf*2, 2)}, v{rB+t+2*(ring>>1)} offset:{(ring&1)*32768 + li*8192 + ks*4096 + hf*512}")
        return r

    stamp(e, 3, cfg, 2)
    e(f"""
    v_add_u32 v{T}, 0x20000, v{rA}
    v_add_u32 v{T+1}, 0x20000, v{rA+1}
    s_waitcnt vmcnt(8)
    s_barrier
    """)
    stamp(e, 1, cfg); stamp(e, 4, cfg, 2)
    rd = rdB(0, 0) + [f"ds_read_b128 {ar(afr(0, mm, ks))}, v{T+ks} offset:{mm*2048}" for mm in range(4) for ks in range(2)] + rdA(0, 0, 1)
    for x in rd[:12]: e(x)
    mix(dmaB(2 * 32768 + 16384, 0) + dmaA(2 * 32768, sAhi), rd[12:])
    if LEAD == 3:
        burst(dmaB(3 * 32768 + 16384, 1))
        burst(dmaA(3 * 32768, sAlo))
    stamp(e, 5, cfg, 2)
    e(f"""
    s_mov_b32 {sIt}, 0
    """)
    if PF == 4:
        e(f"""
        s_cmp_eq_u32 {sI}, 0
        s_cbranch_scc0 L1_tp2
        {touch}
        {tadv}
        s_waitcnt vmcnt({8*(LEAD-1) + 2})
        s_branch L1_tp3
        L1_tp2:
        """)
    e(f"""
    s_waitcnt vmcnt({8*(LEAD-1)})
    L1_tp3:
    s_waitcnt lgkmcnt(0)
    s_barrier
    """)
    stamp(e, 6, cfg); stamp(e, 6, cfg, 2)
    e(f"""
    s_cmp_eq_u32 {sTYPE}, 0
    s_cbranch_scc0 L1_loopH
    """)

    def body(typ, last, lab):
        for st in range(2):
            mf = []
            for L, nm in ((3, 2), (0, 8), (1, 8), (2, 8)):
                for t in range(2):
                    for m in range(nm):
                        for ks in range(2):
                            d = vr(acc(L, t, m)); w = ar(bfr(L, t, ks)); x = ar(afr(st, m, ks))
                            mf.append(mfma(d, x, w) if (typ == 0 and L in (1, 2)) else mfma(d, w, x))
            it = []
            for hp in range(2):
                per = 2 * st + hp
                ring = (per + 1) & 3
                base = hp * 52
                odd = 1 - hp
                dpos = [base + 3 + 6 * d for d in range(8)]
                if cfg.get("stamps") and per == 0: it.append((base, "s_memrealtime s[100:101]"))
                if cfg.get("stamps") and per == 1: it.append((base, [f"s_mov_b32 m0, {sIt}", f"v_writelane_b32 v45, s100, m0"]))
                if cfg.get("stamps") and per == 3 and last: it.append((base, f"v_accvgpr_write_b32 a225, v45"))
                dring = (ring + LEAD) & 3
                dodd = dring & 1
                if not last or per + LEAD <= 2:
                    gB = dmaB(dring * 32768 + 16384, dodd)
                    gA = dmaA(dring * 32768, sAlo if dodd else sAhi)
                    for gi, g in enumerate((gB, gA)):
                        if last and gi == 1: continue
                        it.append((dpos[gi * 4] - 1, g[0]))
                        for q in range(4): it.append((dpos[gi * 4 + q], g[1 + q]))
                        it.append((dpos[gi * 4 + 3] + 1, g[5]))
                if not last and PF == 4:
                    pp = base + cfg.get("pfpos", 48)
                    it.append((pp - 1, f"s_cmp_eq_u32 {sCe}, {per}"))
                    it.append((pp, [f"s_cbranch_scc0 {lab}_nt{per}", touch, tadv, f"{lab}_nt{per}:"]))
                    if per == 0:
                        it.append((base + 1, [f"s_bitcmp1_b32 {sPn}, {sIt}", f"s_cselect_b32 {sCe}, {sCls}, 7"]))
                GP = 0
                if last and per == 0 and PF == 4:
                    p0 = base + 46
                    if W2 == 2:
                        it.append((p0, [f"s_cmp_eq_u32 {sW}, 3", f"s_cbranch_scc0 {lab}_lt", touch, tadv, touch, f"{lab}_lt:"]))
                    if W2 == 3:
                        it.append((p0, [f"s_cmp_eq_u32 {sI}, 1", f"s_cbranch_scc0 {lab}_lt", touch, f"{lab}_lt:"]))
                    it.append((p0 + 1, ["s_mov_b32 s88, s96", "s_mov_b32 s89, s97"]))
                    it.append((p0 + 2, [f"s_mov_b32 s90, {1024*2048}", f"s_lshr_b32 {sP}, s4, 1"]))
                    it.append((p0 + 3, f"v_lshlrev_b32 v{vP}, 7, v{vL}"))
                    it.append((p0 + 4, ["s_mov_b64 exec, 0xffff", touch, "s_mov_b64 exec, -1"]))
                if last and per == GP:
                    ex = ["s_mov_b32 s56, s94", "s_mov_b32 s57, s95", "s_mov_b32 s58, 2048", "s_mov_b32 s59, 0x20000",
                          f"v_and_b32 v{T+5}, 31, v{vL}", f"v_lshlrev_b32 v{T+5}, 4, v{T+5}", f"v_lshrrev_b32 v{T+6}, 5, v{vL}",
                          f"v_lshl_add_u32 v{T+6}, v{T+6}, 11, v{T+5}", "s_lshl_b32 s4, s2, 2", f"s_add_u32 s4, s4, {sW}", "s_lshl_b32 s4, s4, 12"]
                    for i, x in enumerate(ex): it.append((base + i, x))
                    for u in range(4):
                        it.append((base + 23 + 3 * u, f"buffer_load_dwordx4 {ar(GX+u*4)}, v{T+6}, {SA}, s4 offen offset:{u*512}"))
                        it.append((base + 35 + 3 * u, f"buffer_load_dwordx4 {ar(GX+16+u*4)}, v{T+5}, s[56:59], 0 offen offset:{u*512}"))
                rb = rdB(ring, odd); ra = rdA(ring, 1 - st, 0 if odd else 1)
                if last and per == 3: rb, ra = [], []
                if last and per == 2: ra = []
                rd = rb[:4]
                rest_b = rb[4:]
                k = 0
                for i in range(len(ra)):
                    rd.append(ra[i])
                    n = (len(rest_b) * (i + 1)) // len(ra)
                    rd += rest_b[k:n]; k = n
                rd += rest_b[k:]
                if rd:
                    pos = spread(len(rd), base, base + 44, avoid=dpos)
                    for p, x in zip(pos, rd): it.append((p, x))
                if hp == 0:
                    issued = sum(1 for p in pos if p <= 39)
                    it.append((39, f"s_waitcnt lgkmcnt({min(15, issued - 4)})"))
                if not last:
                    w = [f"s_waitcnt vmcnt({8*(LEAD-1)}) lgkmcnt(0)", "s_barrier"]
                else:
                    n0 = (8 if LEAD == 3 else 4) + 8 + XT
                    n1 = 8 + XT
                    w = [[f"s_waitcnt vmcnt({n0}) lgkmcnt(0)", "s_barrier"], [f"s_waitcnt vmcnt({n1}) lgkmcnt(0)", "s_barrier"],
                         ["s_waitcnt lgkmcnt(0)"], []][per]
                if per == 3 and not last:
                    it.append((base + 43, f"s_add_u32 {sIt}, {sIt}, 1"))
                    it.append((base + 50, f"s_cmp_lt_u32 {sIt}, 7"))
                    w.append(f"s_cbranch_scc1 {lab}")
                it.append((base + 51, w))
            for x in place(mf, it): e(x)

    def loop(typ):
        lab = "L1_loopH" if typ else "L1_loopQ"
        e(".p2align 3")
        e(f"{lab}:")
        body(typ, False, lab)
        body(typ, True, lab)

    def blockbase(m, dst, kbs, extra):
        e(f"""
        s_xor_b32 {dst}, s60, {m}
        s_add_u32 {dst}, {dst}, s61
        s_mul_i32 {dst}, {dst}, {kbs*1024}
        s_add_u32 {dst}, {dst}, {extra}
        """)

    tmpi = [0]
    def tq():
        r = T + 4 * (tmpi[0] % 4); tmpi[0] += 1
        return r

    def relu_store(a0, a1, soff, imm):
        r = tq()
        e(f"""
        v_cvt_pk_bf16_f32 v{r}, v{a0}, v{a0+1}
        v_cvt_pk_bf16_f32 v{r+1}, v{a0+2}, v{a0+3}
        v_cvt_pk_bf16_f32 v{r+2}, v{a1}, v{a1+1}
        v_cvt_pk_bf16_f32 v{r+3}, v{a1+2}, v{a1+3}
        v_pk_max_i16 v{r}, v{r}, 0
        v_pk_max_i16 v{r+1}, v{r+1}, 0
        v_pk_max_i16 v{r+2}, v{r+2}, 0
        v_pk_max_i16 v{r+3}, v{r+3}, 0
        buffer_store_dwordx4 {vr(r)}, v{vL16}, {SW}, {soff} offen offset:{imm} {ST}
        """)

    def epi_common():
        stamp(e, 2, cfg)
        e(f"""
        s_lshl_b32 s60, {sQD}, 1
        s_lshl_b32 s61, {sMT}, 4
        s_lshl_b32 s4, {sI}, 3
        s_add_u32 s61, s61, s4
        s_lshl_b32 s62, s50, 1
        s_add_u32 s62, s62, {sJ}
        s_lshl_b32 s62, s62, 10
        s_lshl_b32 s63, s51, 1
        s_add_u32 s63, s63, {sJ}
        s_lshl_b32 s63, s63, 10
        """)
        for m in range(2):
            blockbase(m, "s4", A2_KB, "s62")
            relu_store(acc(3, 0, m), acc(3, 1, m), "s4", 0)

    def phi4(a, P):
        e(f"""
        v_pk_mul_f32 {vr(P,2)}, {vr(a,2)}, s[64:65]
        v_pk_mul_f32 {vr(P+2,2)}, {vr(a+2,2)}, s[64:65]
        v_exp_f32_e64 v{P}, v{P} clamp
        v_max_f32 v{a}, s66, v{a}
        v_exp_f32_e64 v{P+1}, v{P+1} clamp
        v_max_f32 v{a+1}, s66, v{a+1}
        v_exp_f32_e64 v{P+2}, v{P+2} clamp
        v_max_f32 v{a+2}, s66, v{a+2}
        v_exp_f32_e64 v{P+3}, v{P+3} clamp
        v_max_f32 v{a+3}, s66, v{a+3}
        v_pk_add_f32 {vr(a,2)}, {vr(a,2)}, {vr(P,2)}
        v_pk_add_f32 {vr(a+2,2)}, {vr(a+2,2)}, {vr(P+2,2)}
        """)

    def pack8(dst, a0, a1):
        e(f"""
        v_cvt_pk_bf16_f32 v{dst}, v{a0}, v{a0+1}
        v_cvt_pk_bf16_f32 v{dst+1}, v{a0+2}, v{a0+3}
        v_cvt_pk_bf16_f32 v{dst+2}, v{a1}, v{a1+1}
        v_cvt_pk_bf16_f32 v{dst+3}, v{a1+2}, v{a1+3}
        """)

    loop(0)
    epi_common()
    e(f"""
    s_mov_b32 s64, {LOG2E}
    s_mov_b32 s65, {LOG2E}
    s_mov_b32 s66, {EPS}
    s_lshl_b32 s67, {sIDX}, 1
    s_add_u32 s67, s67, {sJ}
    s_lshl_b32 s5, s67, 10
    s_add_u32 s5, s5, {WS_PQ}
    """)
    P = T + 16
    for m in range(8):
        phi4(acc(0, 0, m), P); phi4(acc(0, 1, m), P + 4)
        blockbase(m, "s4", 32, "s5")
        r = tq()
        pack8(r, acc(0, 0, m), acc(0, 1, m))
        e(f"buffer_store_dwordx4 {vr(r)}, v{vL16}, {SW}, s4 offen {ST}")
    KV = acc(0, 0, 0)
    Z = KV + 16; ONES = KV + 24
    for i in range(4): e(f"v_mov_b32 v{ONES+i}, 0x3f803f80")
    for u in range(4):
        for t in range(2):
            phi4(acc(1, t, 2 * u), P); phi4(acc(1, t, 2 * u + 1), P + 4)
            pack8(acc(1, t, 2 * u), acc(1, t, 2 * u), acc(1, t, 2 * u + 1))
        for t in range(2):
            pack8(acc(2, t, 2 * u), acc(2, t, 2 * u), acc(2, t, 2 * u + 1))
        e("s_nop 1")
        for td in range(2):
            for te in range(2):
                d = vr(KV + (td * 2 + te) * 4)
                e(mfma(d, vr(acc(1, td, 2 * u)), vr(acc(2, te, 2 * u)), None if u else "0"))
            d = vr(Z + td * 4)
            e(mfma(d, vr(acc(1, td, 2 * u)), vr(ONES), None if u else "0"))
    e(f"""
    s_mul_i32 s4, {sJ}, 6144
    s_add_u32 s4, s4, {SPARE}
    v_add_u32 v{T}, s4, v{vL16}
    s_nop 7
    s_cmp_eq_u32 {sI}, 0
    s_cbranch_scc1 L1_q_rd
    """)
    for i in range(6): e(f"ds_write_b128 v{T}, {vr(KV+i*4)} offset:{i*1024}")
    e(f"""
    s_waitcnt vmcnt({10 + XT}) lgkmcnt(0)
    s_barrier
    s_branch L1_gate
    L1_q_rd:
    s_barrier
    """)
    R = KV + 32
    for i in range(6): e(f"ds_read_b128 {vr(R+i*4)}, v{T} offset:{i*1024}")
    e(f"""
    s_lshl_b32 s4, s67, 3
    s_add_u32 s4, s4, {sMT}
    s_lshl_b32 s4, s4, 12
    s_add_u32 s4, s4, {WS_KVP}
    s_lshl_b32 s5, s67, 10
    s_lshl_b32 s6, {sMT}, 6
    s_add_u32 s5, s5, s6
    s_add_u32 s5, s5, {WS_ZP}
    v_and_b32 v{T+1}, 48, v{vL}
    s_waitcnt lgkmcnt(0)
    """)
    for i in range(12): e(f"v_pk_add_f32 {vr(KV+i*2,2)}, {vr(KV+i*2,2)}, {vr(R+i*2,2)}")
    for i in range(4): e(f"buffer_store_dwordx4 {vr(KV+i*4)}, v{vL16}, {SW}, s4 offen offset:{i*1024} {ST}")
    e(f"""
    s_mov_b64 s[6:7], exec
    s_mov_b32 exec_lo, 0x00010001
    s_mov_b32 exec_hi, 0x00010001
    buffer_store_dwordx4 {vr(Z)}, v{T+1}, {SW}, s5 offen {ST}
    buffer_store_dwordx4 {vr(Z+4)}, v{T+1}, {SW}, s5 offen offset:512 {ST}
    s_mov_b64 exec, s[6:7]
    s_waitcnt vmcnt({16 + XT})
    s_branch L1_gate
    """)
    loop(1)
    epi_common()
    for m in range(8):
        blockbase(m, "s4", A2_KB, "s63")
        relu_store(acc(0, 0, m), acc(0, 1, m), "s4", 0)
        relu_store(acc(1, 0, m), acc(1, 1, m), "s4", 2048)
        e("s_add_u32 s5, s4, 4096")
        relu_store(acc(2, 0, m), acc(2, 1, m), "s5", 0)
    G0 = ACC + 64
    e(f"s_waitcnt vmcnt({26 + XT})")
    e("L1_gate:")
    stamp(e, 3, cfg)
    for i in range(32): e(f"v_accvgpr_read_b32 v{G0+i}, a{GX+i}")
    e(f"v_mov_b32 v{G0+32}, 0")
    e(f"v_mov_b32 v{G0+33}, 0")
    for i in range(16): e(f"v_dot2c_f32_bf16 v{G0+32+(i&1)}, v{G0+i}, v{G0+16+i}")
    g = G0 + 32
    e(f"""
    s_nop 2
    v_add_f32 v{g}, v{g}, v{g+1}
    s_nop 1
    v_add_f32_dpp v{g}, v{g}, v{g} quad_perm:[1,0,3,2] row_mask:0xf bank_mask:0xf
    s_nop 1
    v_add_f32_dpp v{g}, v{g}, v{g} quad_perm:[2,3,0,1] row_mask:0xf bank_mask:0xf
    s_nop 1
    v_add_f32_dpp v{g}, v{g}, v{g} row_half_mirror row_mask:0xf bank_mask:0xf
    s_nop 1
    v_add_f32_dpp v{g}, v{g}, v{g} row_mirror row_mask:0xf bank_mask:0xf
    s_nop 1
    v_add_f32_dpp v{g}, v{g}, v{g} row_bcast:15 row_mask:0xa bank_mask:0xf
    v_mul_f32 v{g}, 0xbfb8aa3b, v{g}
    v_exp_f32 v{g}, v{g}
    v_lshrrev_b32 v{g+1}, 5, v{vL}
    v_add_f32 v{g}, 1.0, v{g}
    v_rcp_f32 v{g}, v{g}
    v_lshlrev_b32 v{g+1}, 2, v{g+1}
    s_lshl_b32 s4, s2, 2
    s_add_u32 s4, s4, {sW}
    s_lshl_b32 s5, s4, 3
    s_add_u32 s5, s5, {WS_G}
    s_mov_b32 exec_lo, 0x80000000
    s_mov_b32 exec_hi, 0x80000000
    buffer_store_dword v{g}, v{g+1}, {SW}, s5 offen {ST}
    s_mov_b64 exec, 1
    v_mov_b32 v{g+2}, 0
    s_lshl_b32 s5, s2, 7
    s_lshl_b32 s6, {sW}, 2
    s_add_u32 s5, s5, s6
    s_add_u32 s6, s5, {WS_FLAG}
    s_add_u32 s5, s5, {WS_CNT}
    buffer_store_dword v{g+2}, v{g+2}, {SW}, s6 offen {ST}
    buffer_store_dword v{g+2}, v{g+2}, {SW}, s5 offen {ST}
    s_mov_b64 exec, -1
    """)
    if cfg.get("stamps"):
        stamp(e, 4, cfg)
        e("s_waitcnt vmcnt(0)")
        stamp(e, 5, cfg)
        stamp_flush(e, cfg, 8, 0, SW, "L1_st")
        e(f"""
        v_lshlrev_b32 v1, 2, v0
        v_cmp_gt_u32 vcc, 8, v0
        s_and_saveexec_b64 s[68:69], vcc
        s_cbranch_execz L1_st2
        buffer_store_dword a225, v1, {SW}, s3 offen offset:32
        L1_st2:
        """)
    e("L1_end:")
    e("s_endpgm")
    return K, e.text(), dict(vgpr=512, accum=256, sgpr=102)


class VQ:
    def __init__(self, init=()):
        self.q = list(init)
    def op(self, tag): self.q.append(tag)
    def need(self, *tags):
        last = max((i for i, t in enumerate(self.q) if t in tags), default=-1)
        n = len(self.q) - 1 - last
        self.q = self.q[last + 1:]
        assert n <= 63
        return n


def gen_k2(cfg):
    e = Em()
    K = "gm2_kernel"
    SW, SB, SO, SB2 = "s[8:11]", "s[12:15]", "s[16:19]", "s[20:23]"
    sW, sRB, sNB, sKH, sI, sJ = "s24", "s25", "s26", "s27", "s28", "s29"
    sA, sB, sLds, sLds2, sIt, sPart = "s30", "s31", "s32", "s33", "s34", "s35"
    sA2, sB2 = "s36", "s37"
    vL, vL16, vA2 = 1, 2, 3
    vB = 4
    rA, rB = 8, 10
    vFl, vOne, vZero = 14, 15, 16
    vG = 20
    T = 24
    ACC = 48
    def acc(L, t, m): return ACC + ((L * 2 + t) * 4 + m) * 4
    def afr(buf, m, ks): return buf * 32 + (m * 2 + ks) * 4
    def bfr(buf, L, t, ks): return 64 + buf * 32 + ((L * 2 + t) * 2 + ks) * 4
    SPARE = 131072

    e(f"""
    s_cmp_ge_u32 s2, 256
    s_cbranch_scc1 L2_end
    """)
    stamp(e, 0, cfg)
    e(f"""
    s_load_dwordx2 s[40:41], s[0:1], 16
    s_load_dwordx2 s[42:43], s[0:1], 40
    s_load_dwordx2 s[44:45], s[0:1], 56
    s_load_dwordx2 s[46:47], s[0:1], 72
    v_lshrrev_b32 v{T}, 6, v0
    v_and_b32 v{vL}, 63, v0
    v_readfirstlane_b32 {sW}, v{T}
    v_lshlrev_b32 v{vL16}, 4, v{vL}
    s_and_b32 s3, s2, 7
    s_lshr_b32 s4, s2, 3
    """)
    e(f"""
    s_and_b32 {sKH}, s3, 1
    s_lshr_b32 s5, s3, 1
    s_and_b32 s5, s5, 1
    s_lshl_b32 s5, s5, 3
    s_and_b32 s6, s4, 7
    s_add_u32 {sRB}, s5, s6
    s_lshr_b32 s5, s3, 2
    s_lshl_b32 s5, s5, 2
    s_lshr_b32 s6, s4, 3
    s_add_u32 {sNB}, s5, s6
    s_xor_b32 {sPart}, s2, 1
    s_lshr_b32 {sI}, {sW}, 1
    s_and_b32 {sJ}, {sW}, 1
    s_lshl_b32 {sLds}, {sW}, 12
    s_lshl_b32 {sLds2}, {sW}, 11
    v_add_u32 v{vA2}, {A2_KB*1024 - 2048}, v{vL16}
    """)
    e(f"""
    s_lshl_b32 s4, {sRB}, 3
    s_lshl_b32 s5, {sW}, 1
    s_add_u32 s4, s4, s5
    s_mul_i32 s4, s4, {A2_KB*1024}
    s_add_u32 {sA2}, s4, {112*1024}
    s_mul_i32 s5, {sKH}, {56*1024}
    s_add_u32 {sA}, s4, s5
    """)
    e(f"""
    s_mul_i32 s4, {sKH}, 1792
    s_lshl_b32 s5, {sJ}, 5
    s_add_u32 s4, s4, s5
    s_lshl_b32 s4, s4, 11
    s_xor_b32 s5, {sKH}, {sI}
    s_lshl_b32 s6, {sNB}, 1
    s_add_u32 s5, s5, s6
    s_lshl_b32 s5, s5, 7
    s_add_u32 {sB}, s4, s5
    s_add_u32 s50, s6, {sKH}
    s_lshl_b32 s50, s50, 7
    s_lshl_b32 s4, {sW}, 15
    s_add_u32 {sB2}, s4, s50
    """)
    e(f"""
    v_lshrrev_b32 v{T}, 3, v{vL}
    v_lshrrev_b32 v{T+1}, 4, v{vL}
    v_and_b32 v{T+2}, 7, v{vL}
    v_lshlrev_b32 v{T+3}, 1, v{T+1}
    v_xor_b32 v{T+3}, v{T+3}, v{T+2}
    v_lshlrev_b32 v{T+3}, 4, v{T+3}
    v_lshl_add_u32 v{vB}, v{T}, 11, v{T+3}
    v_add_u32 v{vB+1}, {16384-1024}, v{vB}
    v_add_u32 v{vB+2}, {2*(16384-1024)}, v{vB}
    v_add_u32 v{vB+3}, {3*(16384-1024)}, v{vB}
    s_waitcnt lgkmcnt(0)
    s_mov_b32 s8, s46
    s_mov_b32 s9, s47
    s_mov_b32 s10, {WS_SIZE}
    s_mov_b32 s11, 0x20000
    s_mov_b32 s12, s42
    s_mov_b32 s13, s43
    s_mov_b32 s14, {3584*2048}
    s_mov_b32 s15, 0x20000
    s_mov_b32 s16, s44
    s_mov_b32 s17, s45
    s_mov_b32 s18, {2048*2048}
    s_mov_b32 s19, 0x20000
    s_mov_b32 s20, s40
    s_mov_b32 s21, s41
    s_mov_b32 s22, {1024*2048}
    s_mov_b32 s23, 0x20000
    """)
    stamp(e, 1, cfg, 2)
    vq = VQ()
    KP = 176
    ZPv = 208; PQv = 216
    e(f"""
    s_and_b32 s51, s2, 7
    s_lshr_b32 s52, s2, 3
    s_lshl_b32 s4, s52, 15
    s_lshl_b32 s5, {sW}, 10
    s_add_u32 s4, s4, s5
    s_add_u32 s4, s4, {WS_KVP}
    """)
    for p in range(8):
        e(f"buffer_load_dwordx4 {vr(KP+p*4)}, v{vL16}, {SW}, s4 offen")
        vq.op("o")
        if p < 7: e("s_add_u32 s4, s4, 4096")
    e(f"""
    v_lshlrev_b32 v{T+4}, 6, v{T+2}
    v_lshl_add_u32 v{T+4}, v{T+1}, 4, v{T+4}
    s_lshl_b32 s4, s52, 10
    s_add_u32 s4, s4, {WS_ZP}
    buffer_load_dwordx4 {vr(ZPv)}, v{T+4}, {SW}, s4 offen
    buffer_load_dwordx4 {vr(ZPv+4)}, v{T+4}, {SW}, s4 offen offset:512
    s_lshl_b32 s53, s51, 4
    s_lshl_b32 s5, {sW}, 2
    s_add_u32 s53, s53, s5
    s_lshl_b32 s4, s53, 5
    s_add_u32 s4, s4, s52
    s_lshl_b32 s4, s4, 10
    s_add_u32 s4, s4, {WS_PQ}
    """)
    vq.op("o"); vq.op("o")
    for m in range(4):
        e(f"buffer_load_dwordx4 {vr(PQv+m*4)}, v{vL16}, {SW}, s4 offen")
        vq.op("o")
        if m < 3: e("s_add_u32 s4, s4, 32768")

    stamp(e, 2, cfg, 2)
    def dmaA(ring, ph):
        s = sA if ph == 1 else sA2
        fl = "" if ph == 1 else "sc1 "
        r = [f"s_add_u32 m0, {sLds}, {ring*32768}"]
        r += [f"buffer_load_dwordx4 v{vL16 if q < 2 else vA2}, {SW}, {s} offen offset:{q*1024} {fl}lds" for q in range(4)]
        r += [f"s_add_u32 {s}, {s}, 2048"]
        return r

    def dmaB(ring, ph):
        if ph == 1:
            r = [f"s_add_u32 m0, {sLds}, {ring*32768 + 16384}"]
            r += [f"buffer_load_dwordx4 v{vB+q}, {SB}, {sB} offen offset:{q*1024} {cfg.get('pb2','')} lds" for q in range(4)]
            r += [f"s_add_u32 {sB}, {sB}, {64*2048}"]
        else:
            r = [f"s_add_u32 m0, {sLds2}, {ring*32768 + 16384}"]
            r += [f"buffer_load_dwordx4 v{vB+q}, {SB2}, {sB2} offen offset:{q*1024} {cfg.get('pb2','')} lds" for q in range(2)]
            r += [f"s_add_u32 {sB2}, {sB2}, {64*2048}"]
        return r

    for t in range(4):
        for g in (dmaB(t, 1), dmaA(t, 1)):
            e(g[0]); e("s_nop 0")
            for x in g[1:]:
                e(x)
                if x.startswith("buffer"): vq.op(("s", t))
    stamp(e, 3, cfg, 2)
    e(f"""
    v_and_b32 v{T+5}, 15, v{vL}
    v_lshlrev_b32 v{T+6}, 2, v{T+5}
    s_lshl_b32 s4, {sRB}, 9
    s_lshl_b32 s5, {sI}, 8
    s_add_u32 s4, s4, s5
    s_add_u32 s4, s4, {WS_G}
    """)
    for m in range(4):
        e(f"buffer_load_dword v{vG+m}, v{T+6}, {SW}, s4 offen offset:{m*64}")
        vq.op("g")
    e(f"""
    s_lshl_b32 s4, {sI}, 13
    v_add_u32 v{rA}, s4, v{vL16}
    v_add_u32 v{rA+1}, 0x10000, v{rA}
    v_lshrrev_b32 v{T+3}, 2, v{vL}
    v_lshlrev_b32 v{T+3}, 7, v{T+3}
    v_bfe_u32 v{T+4}, v{vL}, 3, 2
    s_lshl_b32 s4, {sJ}, 1
    v_xor_b32 v{T+4}, s4, v{T+4}
    v_lshl_add_u32 v{T+3}, v{T+4}, 5, v{T+3}
    v_and_b32 v{T+4}, 3, v{vL}
    v_lshl_add_u32 v{T+3}, v{T+4}, 3, v{T+3}
    v_add_u32 v{rB}, 16384, v{T+3}
    v_xor_b32 v{rB+1}, 32, v{rB}
    v_add_u32 v{rB+2}, 0x10000, v{rB}
    v_add_u32 v{rB+3}, 0x10000, v{rB+1}
    v_mov_b32 v{vOne}, 1
    v_mov_b32 v{vZero}, 0
    """)
    for i in range(96): e(f"v_mov_b32 v{ACC+i}, 0")
    stamp(e, 4, cfg, 2)
    e(f"s_waitcnt vmcnt({vq.need('o')})")
    stamp(e, 1, cfg); stamp(e, 5, cfg, 2)
    for stp in (4, 2, 1):
        for p in range(stp):
            for h in range(2):
                a = KP + p * 4 + h * 2
                e(f"v_pk_add_f32 {vr(a,2)}, {vr(a,2)}, {vr(a+stp*4,2)}")
    e(f"""
    v_cvt_pk_bf16_f32 v{KP}, v{KP}, v{KP+1}
    v_cvt_pk_bf16_f32 v{KP+1}, v{KP+2}, v{KP+3}
    s_lshl_b32 s4, {sJ}, 10
    s_lshl_b32 s5, {sI}, 3
    s_add_u32 s4, s4, s5
    s_add_u32 s4, s4, {SPARE}
    v_add_u32 v{T}, s4, v{vL16}
    v_add_u32 v{T+1}, {SPARE}, v{vL16}
    ds_write_b64 v{T}, {vr(KP,2)}
    """)
    for dpp in ("quad_perm:[1,0,3,2]", "quad_perm:[2,3,0,1]", "row_half_mirror"):
        for i in range(8):
            e(f"v_add_f32_dpp v{ZPv+i}, v{ZPv+i}, v{ZPv+i} {dpp} row_mask:0xf bank_mask:0xf")
    for i in range(4):
        e(f"v_cvt_pk_bf16_f32 v{ZPv+i}, v{ZPv+2*i}, v{ZPv+2*i+1}")
    e(f"""
    s_waitcnt vmcnt({vq.need(('s',0))}) lgkmcnt(0)
    s_barrier
    ds_read_b128 {vr(KP+4)}, v{T+1}
    ds_read_b128 {vr(KP+8)}, v{T+1} offset:1024
    """)

    def rdA(ring, buf):
        return [f"ds_read_b128 {ar(afr(buf, m, ks))}, v{rA+(ring>>1)} offset:{(ring&1)*32768 + m*2048 + ks*1024}"
                for m in range(4) for ks in range(2)]

    def rdB(ring, buf, ph):
        return [f"ds_read_b64_tr_b16 {ar(bfr(buf, L, t, ks)+hf*2, 2)}, v{rB+t+2*(ring>>1)} offset:{(ring&1)*32768 + L*8192 + ks*4096 + hf*2048}"
                for L in range(2 if ph == 1 else 1) for t in range(2) for ks in range(2) for hf in range(2)]

    rd0 = rdA(0, 0) + rdB(0, 0, 1)
    for x in rd0[:12]: e(x)
    e("s_waitcnt lgkmcnt(12)")
    O = 144
    DEN = KP + 12
    for m in range(4):
        e(mfma(vr(DEN + m * 4), vr(ZPv), vr(PQv + m * 4), "0"))
        e(mfma(vr(O + m * 8), vr(KP + 4), vr(PQv + m * 4), "0"))
        e(mfma(vr(O + m * 8 + 4), vr(KP + 8), vr(PQv + m * 4), "0"))
    for x in rd0[12:]: e(x)
    e(f"""
    s_mul_i32 s4, s53, {A2_KB*1024}
    s_add_u32 s5, s52, 112
    s_lshl_b32 s5, s5, 10
    s_add_u32 s4, s4, s5
    """)
    for m in range(4):
        e(f"v_add_f32 v{DEN+m*4}, {EPS:#x}, v{DEN+m*4}")
    for m in range(4):
        e(f"v_rcp_f32 v{DEN+m*4}, v{DEN+m*4}")
    for m in range(4):
        for h in range(4):
            a = O + m * 8 + h * 2
            e(f"v_pk_mul_f32 {vr(a,2)}, {vr(a,2)}, {vr(DEN+m*4,2)} op_sel_hi:[1,0]")
        for h in range(4):
            e(f"v_cvt_pk_bf16_f32 v{PQv+m*4+h}, v{O+m*8+h*2}, v{O+m*8+h*2+1}")
        e(f"buffer_store_dwordx4 {vr(PQv+m*4)}, v{vL16}, {SW}, s4 offen sc1")
        vq.op("ost")
        if m < 3: e(f"s_add_u32 s4, s4, {A2_KB*1024}")
    e(f"""
    s_mov_b32 {sIt}, 0
    s_lshl_b32 s54, s51, 7
    s_add_u32 s54, s54, {WS_CNT}
    s_lshr_b32 s55, {sRB}, 1
    s_lshl_b32 s55, s55, 7
    s_add_u32 s55, s55, {WS_CNT}
    s_lshl_b32 s4, {sW}, 2
    s_lshl_b32 s56, s2, 7
    s_add_u32 s56, s56, s4
    s_add_u32 s56, s56, {WS_FLAG}
    s_lshl_b32 s57, {sPart}, 7
    s_add_u32 s57, s57, s4
    s_add_u32 s57, s57, {WS_FLAG}
    s_lshl_b32 s4, {sW}, 13
    s_lshl_b32 s58, s2, 15
    s_add_u32 s58, s58, s4
    s_add_u32 s58, s58, {WS_XCH}
    s_lshl_b32 s59, {sPart}, 15
    s_add_u32 s59, s59, s4
    s_add_u32 s59, s59, {WS_XCH}
    s_waitcnt vmcnt({vq.need(('s',1))}) lgkmcnt(0)
    s_barrier
    """)
    stamp(e, 2, cfg); stamp(e, 6, cfg, 2); stamp(e, 7, cfg, 2)

    def step(s, vq, extra=(), tail=(), fixedN=None):
        ph = 1 if s < 28 else 2
        buf = s & 1
        mf = []
        for L in range(2 if ph == 1 else 1):
            for t in range(2):
                for m in range(4):
                    for ks in range(2):
                        mf.append(mfma(vr(acc(L if ph == 1 else 2, t, m)), ar(bfr(buf, L, t, ks)), ar(afr(buf, m, ks))))
        N = len(mf)
        it = []
        vm = []
        dpos = []
        if s + 4 < 44:
            dph = 1 if s + 4 < 28 else 2
            gB, gA = dmaB(s & 3, dph), dmaA(s & 3, dph)
            nd = len(gB) + len(gA) - 4
            dpos = [1 + (d * (N - 1)) // nd for d in range(nd)]
            k = 0
            for g in (gB, gA):
                it.append((dpos[k] - 1, g[0]))
                for x in g[1:-1]:
                    it.append((dpos[k], x)); k += 1
                it.append((min(N - 1, dpos[k - 1] + 1), g[-1]))
        if s + 1 < 44:
            rph = 1 if s + 1 < 28 else 2
            ra, rb = rdA((s + 1) & 3, 1 - buf), rdB((s + 1) & 3, 1 - buf, rph)
            rd = []
            k = 0
            for i in range(len(ra)):
                n = (len(rb) * (i + 1)) // len(ra)
                rd += rb[k:n]; k = n
                rd.append(ra[i])
            hi = N - 4 if ph == 1 else N - 2
            free = [p for p in range(0, hi) if p not in dpos]
            for i, x in enumerate(rd): it.append((free[(i * len(free)) // len(rd)], x))
        it += list(extra)
        body = place(mf, it)
        for x in body:
            tag = None
            if isinstance(x, tuple): x, tag = x
            e(x)
            if x.startswith("buffer"):
                vq.op(tag if tag else ("s", s + 4))
        if s + 1 < 44:
            if s + 2 < 44:
                n = vq.need(("s", s + 2))
                if fixedN is not None:
                    assert n >= fixedN, (s, n)
                    n = fixedN
                e(f"s_waitcnt vmcnt({n}) lgkmcnt(0)")
                e("s_barrier")
            else:
                e("s_waitcnt lgkmcnt(0)")
        for x in tail: e(x)

    e(".p2align 3")
    e("L2_loop:")
    for s in range(4):
        tail = []
        ex = []
        if s == 3:
            tail = [f"s_add_u32 s4, {sIt}, {sW}", "s_cmp_eq_u32 s4, 0", "s_cbranch_scc0 L2_nosig",
                    "s_mov_b64 exec, 1", f"buffer_atomic_add v{vOne}, off, {SW}, s54", "s_mov_b64 exec, -1", "L2_nosig:",
                    f"s_add_u32 {sIt}, {sIt}, 1", f"s_cmp_lt_u32 {sIt}, 6", "s_cbranch_scc1 L2_loop"]
        if s == 0:
            ex = [(0, (f"buffer_load_dword v{vFl}, off, {SW}, s55 sc1", "cnt"))]
        step(s, vq, ex, tail, fixedN=16)
    assert "ost" not in vq.q and "cnt" not in vq.q
    vq = VQ([("s", 26)] * 8 + [("s", 27)] * 8)
    stamp(e, 3, cfg)
    e(f"""
    v_readfirstlane_b32 s4, v{vFl}
    s_nop 0
    s_cmp_ge_u32 s4, 32
    s_cbranch_scc1 L2_oready
    s_mov_b32 s5, 0
    L2_ospin:
    s_add_u32 s5, s5, 1
    s_cmp_gt_u32 s5, 0x40000
    s_cbranch_scc1 L2_oready
    s_sleep 2
    buffer_load_dword v{vFl}, off, {SW}, s55 sc1
    s_waitcnt vmcnt(0)
    v_readfirstlane_b32 s4, v{vFl}
    s_nop 0
    s_cmp_ge_u32 s4, 32
    s_cbranch_scc0 L2_ospin
    L2_oready:
    """)
    FS, FP, FC = cfg.get("fs", 31), cfg.get("fp", 35), cfg.get("fc", 38)
    for s in range(24, 44):
        ex = []; tail = []
        if s in (28, 29):
            t = s - 28
            for m in range(4):
                ex.append((8 + 2 * m if s == 28 else 2 + 3 * m,
                           (f"buffer_store_dwordx4 {vr(acc(1, t, m))}, v{vL16}, {SW}, s58 offen offset:{m*1024} sc1", "xst")))
            if s == 28: tail = ["s_add_u32 s58, s58, 4096"]
        if s == 28: stamp(e, 4, cfg)
        if s == FS + 1:
            assert "xst" not in vq.q
            ex += [(0, ["s_mov_b64 exec, 1", (f"buffer_store_dword v{vOne}, off, {SW}, s56 sc1", "fl"), "s_mov_b64 exec, -1", "s_nop 3"])]
        if s == FP:
            ex += [(0, (f"buffer_load_dword v{vFl}, off, {SW}, s57 sc1", "pf"))]
        if s == FC:
            assert "pf" not in vq.q
            e(f"""
            v_readfirstlane_b32 s4, v{vFl}
            s_nop 0
            s_cmp_eq_u32 s4, 1
            s_cbranch_scc1 L2_pready
            s_mov_b32 s5, 0
            L2_pspin:
            s_add_u32 s5, s5, 1
            s_cmp_gt_u32 s5, 0x40000
            s_cbranch_scc1 L2_pready
            s_sleep 1
            buffer_load_dword v{vFl}, off, {SW}, s57 sc1
            s_waitcnt vmcnt(0)
            v_readfirstlane_b32 s4, v{vFl}
            s_nop 0
            s_cmp_eq_u32 s4, 1
            s_cbranch_scc0 L2_pspin
            L2_pready:
            """)
        if s in (FC, FC + 1):
            t = s - FC
            for m in range(4):
                ex.append((2 + 3 * m, (f"buffer_load_dwordx4 {vr(acc(3, t, m))}, v{vL16}, {SW}, s59 offen offset:{m*1024} sc1", "rx")))
            if s == FC: tail = ["s_add_u32 s59, s59, 4096"]
        step(s, vq, ex, tail)
    stamp(e, 5, cfg)
    e(f"""
    v_and_b32 v{T}, 15, v{vL}
    v_bfe_u32 v{T+1}, v{vL}, 4, 1
    v_lshrrev_b32 v{T+2}, 5, v{vL}
    v_lshlrev_b32 v{T}, 11, v{T}
    v_lshl_add_u32 v{T}, v{T+1}, 5, v{T}
    v_lshl_add_u32 v{T}, v{T+2}, 4, v{T}
    s_lshl_b32 s4, {sRB}, 18
    s_lshl_b32 s5, {sI}, 17
    s_add_u32 s4, s4, s5
    s_lshl_b32 s5, {sJ}, 6
    s_add_u32 s4, s4, s5
    s_add_u32 s4, s4, s50
    s_waitcnt vmcnt(0)
    """)
    for m in range(4):
        gg = T + 4; og = T + 6
        e(f"v_mov_b32 v{gg}, v{vG+m}")
        e(f"v_sub_f32 v{og}, 1.0, v{vG+m}")
        for t in range(2):
            for h in range(2):
                b = acc(0, t, m) + 2 * h; r = acc(3, t, m) + 2 * h; a = acc(2, t, m) + 2 * h
                e(f"v_pk_add_f32 {vr(b,2)}, {vr(b,2)}, {vr(r,2)}")
                e(f"v_pk_mul_f32 {vr(b,2)}, {vr(b,2)}, {vr(og,2)} op_sel_hi:[1,0]")
                e(f"v_pk_fma_f32 {vr(b,2)}, {vr(a,2)}, {vr(gg,2)}, {vr(b,2)} op_sel_hi:[1,0,1]")
        r = T + 8 + 4 * m
        for t in range(2):
            for h in range(2):
                e(f"v_cvt_pk_bf16_f32 v{r+2*t+h}, v{acc(0,t,m)+2*h}, v{acc(0,t,m)+2*h+1}")
        e(f"""
        s_nop 1
        v_permlane16_swap_b32 v{r}, v{r+2}
        v_permlane16_swap_b32 v{r+1}, v{r+3}
        buffer_store_dwordx4 {vr(r)}, v{T}, {SO}, s4 offen
        """)
        if m < 3: e(f"s_add_u32 s4, s4, {16*2048}")
    if cfg.get("stamps"):
        stamp(e, 6, cfg)
        e("s_waitcnt vmcnt(0)")
        stamp(e, 7, cfg)
        stamp_flush(e, cfg, 8, 1, SW, "L2_st")
    e("L2_end:")
    e("s_endpgm")
    return K, e.text(), dict(vgpr=384, accum=256, sgpr=96)


HEAD = """; Kernarg layout for this problem (80 bytes, ptrs only, base s[0:1]):
"""


def build(cfg=None):
    cfg = cfg or {}
    ks = [gen_k1(cfg), gen_k2(cfg)]
    s = HEAD
    for k, _, _ in ks:
        s += f"; @launch kernel={k} grid=(256,1,1) block=(256,1,1) lds=163840\n"
    s += '.amdgcn_target "amdgcn-amd-amdhsa--gfx950"\n.text\n'
    for k, body, d in ks:
        s += f".globl {k}\n.p2align 8\n.type {k},@function\n{k}:\n" + body
    s += '.section .rodata,"a"\n'
    for k, body, d in ks:
        s += f""".p2align 6
.amdhsa_kernel {k}
  .amdhsa_next_free_vgpr {d['vgpr']}
  .amdhsa_next_free_sgpr {d['sgpr']}
  .amdhsa_accum_offset {d['accum']}
  .amdhsa_group_segment_fixed_size 0
  .amdhsa_kernarg_size 80
  .amdhsa_user_sgpr_count 2
  .amdhsa_user_sgpr_kernarg_segment_ptr 1
  .amdhsa_system_sgpr_workgroup_id_x 1
  .amdhsa_float_denorm_mode_32 3
.end_amdhsa_kernel
"""
    return s


if __name__ == "__main__":
    out = sys.argv[1] if len(sys.argv) > 1 else f"cdna_kernels/{NAME}.s"
    cfg = {}
    for a in sys.argv[2:]:
        k, v = a.split("=")
        cfg[k] = int(v) if v.lstrip("-").isdigit() else v
    open(out, "w").write(build(cfg))
    print("wrote", out)
```

```python
import sys

NAME = "gated_mix__linear_attn_block__dense_activation_relu__prompt"

A2_KB = 144
WS_A2 = 0
WS_PQ = 0x1200000
WS_KVP = 0x1600000
WS_ZP = 0x1700000
WS_G = 0x1710000
WS_FLAG = 0x1720000
WS_CNT = 0x1730000
WS_STAMP = 0x1740000
WS_XCH = 0x1800000
WS_SIZE = 0x2000000

LOG2E = 0x3fb8aa3b
EPS = 0x358637bd


class Em:
    def __init__(self):
        self.l = []

    def __call__(self, s):
        for x in s.strip("\n").split("\n"):
            x = x.strip()
            if x:
                self.l.append(x if x.endswith(":") else "  " + x)

    def text(self):
        return "\n".join(self.l) + "\n"


def place(mf, items):
    by = {}
    for p, ins in items:
        by.setdefault(p, []).extend(ins if isinstance(ins, list) else [ins])
    out = list(by.get(-1, []))
    for i, x in enumerate(mf):
        out.append(x)
        out += by.get(i, [])
    assert all(-1 <= p < len(mf) for p in by), (sorted(by), len(mf))
    return out


def vr(b, n=4, c="v"):
    return f"{c}[{b}:{b+n-1}]" if n > 1 else f"{c}{b}"


def ar(b, n=4):
    return vr(b, n, "a")


def mfma(d, a, b, c=None):
    return f"v_mfma_f32_16x16x32_bf16 {d}, {a}, {b}, {d if c is None else c}"


def spread(n, lo, hi, avoid=()):
    free = [p for p in range(lo, hi) if p not in avoid]
    return [free[(i * len(free)) // n] for i in range(n)]


def stamp(e, idx, cfg, mode=1):
    if cfg.get("stamps") and (cfg.get("smode", 1) == mode or idx == 0):
        e(f"s_memrealtime s[{70+2*idx}:{71+2*idx}]")


def stamp_flush(e, cfg, nst, kidx, srd, lab):
    if not cfg.get("stamps"):
        return
    e("s_waitcnt lgkmcnt(0)")
    for i in range(nst):
        e(f"v_mov_b32 v{2+i}, s{70+2*i}")
    e(f"""
    s_lshl_b32 s3, s2, 6
    s_add_u32 s3, s3, {WS_STAMP + kidx*16384}
    v_mov_b32 v1, 0
    v_cmp_eq_u32 vcc, 0, v0
    s_and_saveexec_b64 s[68:69], vcc
    s_cbranch_execz {lab}
    buffer_store_dwordx4 v[2:5], v1, {srd}, s3 offen
    buffer_store_dwordx4 v[6:9], v1, {srd}, s3 offen offset:16
    {lab}:
    s_mov_b64 exec, s[68:69]
    """)


def gen_k1(cfg):
    e = Em()
    K = "gm1_kernel"
    ST = cfg.get("st1", "sc1")
    SA, SB0, SB1, SW = "s[8:11]", "s[12:15]", "s[16:19]", "s[20:23]"
    sW, sMT, sTYPE, sIDX, sSH, sQD = "s24", "s25", "s26", "s27", "s28", "s29"
    sAlo, sAhi, sB0, sB1, sB0st, sB1st, sLds, sIt = "s30", "s31", "s32", "s33", "s34", "s35", "s36", "s37"
    sI, sJ = "s38", "s39"
    vL, vL16 = 1, 2
    vA, vB0, vB1 = 4, 8, 12
    rA, rB = 16, 20
    T = 24
    ACC = 48
    def acc(L, t, m):
        if L == 3:
            return ACC + 192 + (t * 2 + m) * 4
        return ACC + ((L * 2 + t) * 8 + m) * 4
    def afr(buf, m, ks): return buf * 64 + (m * 2 + ks) * 4
    def bfr(L, t, ks): return 128 + ((L * 2 + t) * 2 + ks) * 4
    GX = 192

    SPARE = 131072
    PF = cfg.get("pf", 4)
    LEAD = cfg.get("lead", 3)
    W2 = cfg.get("w2mode", 2)
    W2M = {1: (0x60, 0x60), 2: (0x60, 0), 3: (0x40, 0x40)}[W2]
    XT = 1 if PF == 4 else 0
    sCe = "s87"
    SP, sP, sPst, vP, vD = "s[88:91]", "s92", "s93", 3, 224
    sCls, sPn = "s99", "s98"
    def lines(txt): return [x.strip() for x in txt.strip().split("\n") if x.strip()]

    def dmaA(ldsoff, sreg):
        r = [f"s_add_u32 m0, {sLds}, {ldsoff}"]
        r += [f"buffer_load_dwordx4 v{vA+q}, {SA}, {sreg} offen offset:{q*1024} {cfg.get('pa1','')} lds" for q in range(4)]
        r += [f"s_add_u32 {sreg}, {sreg}, 128"]
        return r

    def dmaB(ldsoff, odd):
        srd, vb, sreg, sst = (SB1, vB1, sB1, sB1st) if odd else (SB0, vB0, sB0, sB0st)
        r = [f"s_add_u32 m0, {sLds}, {ldsoff}"]
        r += [f"buffer_load_dwordx4 v{vb+q}, {srd}, {sreg} offen offset:{q*1024} {cfg.get('pb1','')} lds" for q in range(4)]
        r += [f"s_add_u32 {sreg}, {sreg}, {sst}"]
        return r

    def burst(g):
        e(g[0]); e("s_nop 0")
        for x in g[1:]: e(x)

    def mix(main, fill):
        for i in range(len(main)):
            e(main[i])
            for x in fill[(i * len(fill)) // len(main):((i + 1) * len(fill)) // len(main)]: e(x)

    touch = f"buffer_load_dword a{vD}, v{vP}, {SP}, {sP} offen"
    tadv = f"s_add_u32 {sP}, {sP}, {sPst}"

    T0 = cfg.get("t0", 2)
    def pfsetup():
        e(f"""
        s_bfe_u32 {sCls}, s2, 0x20003
        s_mov_b32 s91, 0x20000
        v_lshlrev_b32 v{vP}, 7, v{vL}
        v_mov_b32 v{T+6}, 0x40000000
        s_cmp_eq_u32 {sI}, 0
        s_cbranch_scc1 L1_pfa
        s_lshl_b32 s5, {sJ}, 1
        s_xor_b32 {sCls}, {sCls}, s5
        s_mov_b32 s88, s46
        s_mov_b32 s89, s47
        s_mov_b32 s90, {3584*2048}
        s_mov_b32 {sPst}, 7168
        s_lshl_b32 s5, s2, 1
        s_add_u32 s5, s5, {sJ}
        s_mul_i32 {sP}, s5, {2*7168}
        s_cmp_eq_u32 {sJ}, 0
        s_mov_b32 {sPn}, {W2M[1]}
        s_cmov_b32 {sPn}, {W2M[0]}
        v_cmp_le_u32 vcc, {sPst}, v{vP}
        s_branch L1_pfd
        L1_pfa:
        s_mov_b32 {sPn}, 31
        s_cmp_eq_u32 {sJ}, 0
        s_cbranch_scc0 L1_pfx
        s_bitcmp0_b32 s2, 0
        s_cselect_b32 s88, s42, s44
        s_cselect_b32 s89, s43, s45
        s_mov_b32 s5, 7168
        s_cmov_b32 s5, 6144
        s_lshl_b32 s90, s5, 10
        s_lshl_b32 {sPst}, s5, 7
        s_lshr_b32 s6, s2, 1
        s_mul_i32 {sP}, s6, s5
        {'' if T0 else tadv}
        v_cmp_le_u32 vcc, s5, v{vP}
        s_branch L1_pfd
        L1_pfx:
        s_mov_b32 s88, s40
        s_mov_b32 s89, s41
        s_mov_b32 s90, {2048*2048}
        s_mov_b32 {sPst}, 256
        s_lshl_b32 {sP}, s2, 14
        s_add_u32 {sP}, {sP}, {128 if T0 else 384}
        v_lshrrev_b32 v{vP}, 1, v{vL}
        v_lshlrev_b32 v{vP}, 11, v{vP}
        v_and_b32 v{T+5}, 1, v{vL}
        v_cmp_lt_u32 vcc, 15, v{vL}
        v_lshl_add_u32 v{vP}, v{T+5}, 7, v{vP}
        L1_pfd:
        s_nop 1
        v_cndmask_b32 v{vP}, v{vP}, v{T+6}, vcc
        """)
    def tpro(n):
        e(f"""
        s_cmp_eq_u32 {sI}, 0
        s_cbranch_scc0 L1_tp{n}
        {touch}
        {tadv}
        L1_tp{n}:
        """)
    e(f"""
    s_cmp_ge_u32 s2, 256
    s_cbranch_scc1 L1_end
    """)
    stamp(e, 0, cfg)
    e(f"""
    s_load_dwordx4 s[40:43], s[0:1], 0
    s_load_dwordx4 s[44:47], s[0:1], 32
    s_load_dwordx2 s[48:49], s[0:1], 72
    s_load_dwordx2 s[94:95], s[0:1], 48
    s_load_dwordx2 s[96:97], s[0:1], 16
    v_lshrrev_b32 v3, 6, v0
    v_and_b32 v{vL}, 63, v0
    v_readfirstlane_b32 {sW}, v3
    v_lshrrev_b32 v{T}, 3, v{vL}
    v_lshrrev_b32 v{T+1}, 4, v{vL}
    v_and_b32 v{T+2}, 7, v{vL}
    v_xor_b32 v{T+3}, v{T+2}, v{T+1}
    v_lshlrev_b32 v{T+4}, 11, v{T}
    v_lshl_add_u32 v{vA}, v{T+3}, 4, v{T+4}
    v_xor_b32 v{vA+1}, 64, v{vA}
    v_add_u32 v{vA+2}, {2*16384 - 2048}, v{vA}
    v_add_u32 v{vA+1}, {16384 - 1024}, v{vA+1}
    v_add_u32 v{vA+3}, {2*16384 - 2048}, v{vA+1}
    s_and_b32 s5, s2, 1
    s_lshl_b32 s5, s5, 2
    s_bfe_u32 s6, s2, 0x20003
    s_add_u32 {sMT}, s5, s6
    s_bfe_u32 {sQD}, s2, 0x20005
    s_lshr_b32 {sI}, {sW}, 1
    s_and_b32 {sJ}, {sW}, 1
    s_lshl_b32 {sLds}, {sW}, 12
    s_xor_b32 s4, {sJ}, {sQD}
    s_lshl_b32 s4, s4, 5
    s_lshl_b32 s5, {sMT}, 8
    s_lshl_b32 s6, {sI}, 7
    s_add_u32 s5, s5, s6
    s_add_u32 s6, s5, s4
    s_lshl_b32 {sAlo}, s6, 11
    s_xor_b32 {sAhi}, {sAlo}, {64 << 11}
    s_mov_b32 s10, {2048*2048}
    s_mov_b32 s11, 0x20000
    s_waitcnt lgkmcnt(0)
    s_mov_b32 s8, s40
    s_mov_b32 s9, s41
    """)
    stamp(e, 1, cfg, 2)
    if PF == 4 and T0 == 1:
        pfsetup(); tpro(0)
    burst(dmaA(SPARE, sAlo))
    if PF == 4 and T0 == 2:
        pfsetup(); tpro(0)
    burst(dmaA(0, sAhi))
    e(f"""
    s_bfe_u32 s3, s2, 0x20001
    s_bfe_u32 {sTYPE}, s2, 0x10005
    s_lshr_b32 s5, s2, 6
    s_lshl_b32 s6, s3, 2
    s_add_u32 {sIDX}, s5, s6
    s_lshr_b32 {sSH}, {sIDX}, 1
    s_mul_i32 s50, {sSH}, 7
    s_and_b32 s51, {sIDX}, 1
    s_mul_i32 s51, s51, 3
    s_add_u32 s51, s51, s50
    s_add_u32 s50, s50, 6
    v_and_b32 v{T+3}, 1, v{T+1}
    v_lshlrev_b32 v{T+3}, 1, v{T+3}
    v_xor_b32 v{T+3}, v{T+3}, v{T+2}
    v_lshlrev_b32 v{T+3}, 4, v{T+3}
    v_xor_b32 v{T+4}, 64, v{T+3}
    s_cmp_eq_u32 {sTYPE}, 0
    s_cselect_b32 s52, {sIDX}, s51
    s_cselect_b32 s53, 16, 1
    s_cselect_b32 s16, s42, s44
    s_cselect_b32 s17, s43, s45
    s_mov_b32 s54, 7168
    s_cmov_b32 s54, 6144
    s_cmp_eq_u32 {sI}, 0
    s_cselect_b32 s4, s50, s52
    s_cselect_b32 s55, 7168, s54
    s_cselect_b32 s12, s44, s16
    s_cselect_b32 s13, s45, s17
    s_lshl_b32 s14, s55, 10
    s_mov_b32 s15, 0x20000
    s_lshl_b32 s7, {sJ}, 5
    s_lshl_b32 s4, s4, 7
    s_mul_i32 s6, s7, s55
    s_add_u32 {sB0}, s4, s6
    s_lshl_b32 {sB0st}, s55, 6
    """)
    def bvoff(vb, sp):
        e(f"""
        s_lshl_b32 s4, {sp}, 3
        s_sub_u32 s4, s4, 1024
        s_lshl_b32 s5, s4, 1
        v_mul_lo_u32 v{T+5}, v{T}, {sp}
        v_add_u32 v{vb}, v{T+5}, v{T+3}
        v_add3_u32 v{vb+1}, v{T+5}, v{T+4}, s4
        v_add_u32 v{vb+2}, s5, v{vb}
        v_add_u32 v{vb+3}, s5, v{vb+1}
        """)
    bvoff(vB0, "s55")
    burst(dmaB(16384, 0))
    e(f"""
    s_add_u32 s4, {sI}, 1
    s_mul_i32 s4, s4, s53
    s_add_u32 s4, s4, s52
    s_lshl_b32 s4, s4, 7
    s_mul_i32 s6, s7, s54
    s_add_u32 {sB1}, s4, s6
    s_lshl_b32 {sB1st}, s54, 6
    s_lshl_b32 s18, s54, 10
    s_mov_b32 s19, 0x20000
    """)
    bvoff(vB1, "s54")
    e(f"""
    v_lshlrev_b32 v{vL16}, 4, v{vL}
    v_and_b32 v{T}, 15, v{vL}
    v_lshrrev_b32 v{T+3}, 1, v{T}
    v_xor_b32 v{T+3}, v{T+3}, v{T+1}
    v_lshlrev_b32 v{T+3}, 4, v{T+3}
    v_lshl_add_u32 v{T+3}, v{T}, 7, v{T+3}
    s_lshl_b32 s4, {sI}, 13
    v_add_u32 v{rA}, s4, v{T+3}
    v_xor_b32 v{rA+1}, 64, v{rA}
    v_add_u32 v{rA+2}, 0x10000, v{rA}
    v_add_u32 v{rA+3}, 0x10000, v{rA+1}
    v_bfe_u32 v{T}, v{vL}, 2, 2
    v_lshl_add_u32 v{T+3}, v{T+1}, 3, v{T}
    v_lshlrev_b32 v{T+3}, 7, v{T+3}
    v_bfe_u32 v{T+4}, v{vL}, 3, 2
    s_lshl_b32 s4, {sJ}, 1
    v_xor_b32 v{T+4}, s4, v{T+4}
    v_lshl_add_u32 v{T+3}, v{T+4}, 5, v{T+3}
    v_and_b32 v{T+4}, 3, v{vL}
    v_lshl_add_u32 v{T+3}, v{T+4}, 3, v{T+3}
    v_add_u32 v{rB}, 16384, v{T+3}
    v_xor_b32 v{rB+1}, 32, v{rB}
    v_add_u32 v{rB+2}, 0x10000, v{rB}
    v_add_u32 v{rB+3}, 0x10000, v{rB+1}
    s_mov_b32 s20, s48
    s_mov_b32 s21, s49
    s_mov_b32 s22, {WS_SIZE}
    s_mov_b32 s23, 0x20000
    """)
    if PF == 4 and not T0: pfsetup()
    stamp(e, 2, cfg, 2)
    mix(dmaB(32768 + 16384, 1) + dmaA(32768, sAlo), [f"v_mov_b32 v{ACC+i}, 0" for i in range(208)])
    if PF == 4: tpro(1)

    def rdA(ring, buf, half):
        r = []
        for mm in range(4):
            for ks in range(2):
                r.append(f"ds_read_b128 {ar(afr(buf, half*4+mm, ks))}, v{rA+ks+2*(ring>>1)} offset:{(ring&1)*32768 + mm*2048}")
        return r

    def rdB(ring, odd):
        r = []
        for li, L in enumerate((1, 2) if odd else (3, 0)):
            for t in range(2):
                for ks in range(2):
                    for hf in range(2):
                        r.append(f"ds_read_b64_tr_b16 {ar(bfr(L, t, ks)+hf*2, 2)}, v{rB+t+2*(ring>>1)} offset:{(ring&1)*32768 + li*8192 + ks*4096 + hf*512}")
        return r

    stamp(e, 3, cfg, 2)
    e(f"""
    v_add_u32 v{T}, 0x20000, v{rA}
    v_add_u32 v{T+1}, 0x20000, v{rA+1}
    s_waitcnt vmcnt(8)
    s_barrier
    """)
    stamp(e, 1, cfg); stamp(e, 4, cfg, 2)
    rd = rdB(0, 0) + [f"ds_read_b128 {ar(afr(0, mm, ks))}, v{T+ks} offset:{mm*2048}" for mm in range(4) for ks in range(2)] + rdA(0, 0, 1)
    for x in rd[:12]: e(x)
    mix(dmaB(2 * 32768 + 16384, 0) + dmaA(2 * 32768, sAhi), rd[12:])
    if LEAD == 3:
        burst(dmaB(3 * 32768 + 16384, 1))
        burst(dmaA(3 * 32768, sAlo))
    stamp(e, 5, cfg, 2)
    e(f"""
    s_mov_b32 {sIt}, 0
    """)
    if PF == 4:
        e(f"""
        s_cmp_eq_u32 {sI}, 0
        s_cbranch_scc0 L1_tp2
        {touch}
        {tadv}
        s_waitcnt vmcnt({8*(LEAD-1) + 2})
        s_branch L1_tp3
        L1_tp2:
        """)
    e(f"""
    s_waitcnt vmcnt({8*(LEAD-1)})
    L1_tp3:
    s_waitcnt lgkmcnt(0)
    s_barrier
    """)
    stamp(e, 6, cfg); stamp(e, 6, cfg, 2)
    e(f"""
    s_cmp_eq_u32 {sTYPE}, 0
    s_cbranch_scc0 L1_loopH
    """)

    def body(typ, last, lab):
        for st in range(2):
            mf = []
            for L, nm in ((3, 2), (0, 8), (1, 8), (2, 8)):
                for t in range(2):
                    for m in range(nm):
                        for ks in range(2):
                            d = vr(acc(L, t, m)); w = ar(bfr(L, t, ks)); x = ar(afr(st, m, ks))
                            mf.append(mfma(d, x, w) if (typ == 0 and L in (1, 2)) else mfma(d, w, x))
            it = []
            for hp in range(2):
                per = 2 * st + hp
                ring = (per + 1) & 3
                base = hp * 52
                odd = 1 - hp
                dpos = [base + 3 + 6 * d for d in range(8)]
                if cfg.get("stamps") and per == 0: it.append((base, "s_memrealtime s[100:101]"))
                if cfg.get("stamps") and per == 1: it.append((base, [f"s_mov_b32 m0, {sIt}", f"v_writelane_b32 v45, s100, m0"]))
                if cfg.get("stamps") and per == 3 and last: it.append((base, f"v_accvgpr_write_b32 a225, v45"))
                dring = (ring + LEAD) & 3
                dodd = dring & 1
                if not last or per + LEAD <= 2:
                    gB = dmaB(dring * 32768 + 16384, dodd)
                    gA = dmaA(dring * 32768, sAlo if dodd else sAhi)
                    for gi, g in enumerate((gB, gA)):
                        if last and gi == 1: continue
                        it.append((dpos[gi * 4] - 1, g[0]))
                        for q in range(4): it.append((dpos[gi * 4 + q], g[1 + q]))
                        it.append((dpos[gi * 4 + 3] + 1, g[5]))
                if not last and PF == 4:
                    pp = base + cfg.get("pfpos", 48)
                    it.append((pp - 1, f"s_cmp_eq_u32 {sCe}, {per}"))
                    it.append((pp, [f"s_cbranch_scc0 {lab}_nt{per}", touch, tadv, f"{lab}_nt{per}:"]))
                    if per == 0:
                        it.append((base + 1, [f"s_bitcmp1_b32 {sPn}, {sIt}", f"s_cselect_b32 {sCe}, {sCls}, 7"]))
                GP = 0
                if last and per == 0 and PF == 4:
                    p0 = base + 46
                    if W2 == 2:
                        it.append((p0, [f"s_cmp_eq_u32 {sW}, 3", f"s_cbranch_scc0 {lab}_lt", touch, tadv, touch, f"{lab}_lt:"]))
                    if W2 == 3:
                        it.append((p0, [f"s_cmp_eq_u32 {sI}, 1", f"s_cbranch_scc0 {lab}_lt", touch, f"{lab}_lt:"]))
                    it.append((p0 + 1, ["s_mov_b32 s88, s96", "s_mov_b32 s89, s97"]))
                    it.append((p0 + 2, [f"s_mov_b32 s90, {1024*2048}", f"s_lshr_b32 {sP}, s4, 1"]))
                    it.append((p0 + 3, f"v_lshlrev_b32 v{vP}, 7, v{vL}"))
                    it.append((p0 + 4, ["s_mov_b64 exec, 0xffff", touch, "s_mov_b64 exec, -1"]))
                if last and per == GP:
                    ex = ["s_mov_b32 s56, s94", "s_mov_b32 s57, s95", "s_mov_b32 s58, 2048", "s_mov_b32 s59, 0x20000",
                          f"v_and_b32 v{T+5}, 31, v{vL}", f"v_lshlrev_b32 v{T+5}, 4, v{T+5}", f"v_lshrrev_b32 v{T+6}, 5, v{vL}",
                          f"v_lshl_add_u32 v{T+6}, v{T+6}, 11, v{T+5}", "s_lshl_b32 s4, s2, 2", f"s_add_u32 s4, s4, {sW}", "s_lshl_b32 s4, s4, 12"]
                    for i, x in enumerate(ex): it.append((base + i, x))
                    for u in range(4):
                        it.append((base + 23 + 3 * u, f"buffer_load_dwordx4 {ar(GX+u*4)}, v{T+6}, {SA}, s4 offen offset:{u*512}"))
                        it.append((base + 35 + 3 * u, f"buffer_load_dwordx4 {ar(GX+16+u*4)}, v{T+5}, s[56:59], 0 offen offset:{u*512}"))
                rb = rdB(ring, odd); ra = rdA(ring, 1 - st, 0 if odd else 1)
                if last and per == 3: rb, ra = [], []
                if last and per == 2: ra = []
                rd = rb[:4]
                rest_b = rb[4:]
                k = 0
                for i in range(len(ra)):
                    rd.append(ra[i])
                    n = (len(rest_b) * (i + 1)) // len(ra)
                    rd += rest_b[k:n]; k = n
                rd += rest_b[k:]
                if rd:
                    pos = spread(len(rd), base, base + 44, avoid=dpos)
                    for p, x in zip(pos, rd): it.append((p, x))
                if hp == 0:
                    issued = sum(1 for p in pos if p <= 39)
                    it.append((39, f"s_waitcnt lgkmcnt({min(15, issued - 4)})"))
                if not last:
                    w = [f"s_waitcnt vmcnt({8*(LEAD-1)}) lgkmcnt(0)", "s_barrier"]
                else:
                    n0 = (8 if LEAD == 3 else 4) + 8 + XT
                    n1 = 8 + XT
                    w = [[f"s_waitcnt vmcnt({n0}) lgkmcnt(0)", "s_barrier"], [f"s_waitcnt vmcnt({n1}) lgkmcnt(0)", "s_barrier"],
                         ["s_waitcnt lgkmcnt(0)"], []][per]
                if per == 3 and not last:
                    it.append((base + 43, f"s_add_u32 {sIt}, {sIt}, 1"))
                    it.append((base + 50, f"s_cmp_lt_u32 {sIt}, 7"))
                    w.append(f"s_cbranch_scc1 {lab}")
                it.append((base + 51, w))
            for x in place(mf, it): e(x)

    def loop(typ):
        lab = "L1_loopH" if typ else "L1_loopQ"
        e(".p2align 3")
        e(f"{lab}:")
        body(typ, False, lab)
        body(typ, True, lab)

    def blockbase(m, dst, kbs, extra):
        e(f"""
        s_xor_b32 {dst}, s60, {m}
        s_add_u32 {dst}, {dst}, s61
        s_mul_i32 {dst}, {dst}, {kbs*1024}
        s_add_u32 {dst}, {dst}, {extra}
        """)

    tmpi = [0]
    def tq():
        r = T + 4 * (tmpi[0] % 4); tmpi[0] += 1
        return r

    def relu_store(a0, a1, soff, imm):
        r = tq()
        e(f"""
        v_cvt_pk_bf16_f32 v{r}, v{a0}, v{a0+1}
        v_cvt_pk_bf16_f32 v{r+1}, v{a0+2}, v{a0+3}
        v_cvt_pk_bf16_f32 v{r+2}, v{a1}, v{a1+1}
        v_cvt_pk_bf16_f32 v{r+3}, v{a1+2}, v{a1+3}
        v_pk_max_i16 v{r}, v{r}, 0
        v_pk_max_i16 v{r+1}, v{r+1}, 0
        v_pk_max_i16 v{r+2}, v{r+2}, 0
        v_pk_max_i16 v{r+3}, v{r+3}, 0
        buffer_store_dwordx4 {vr(r)}, v{vL16}, {SW}, {soff} offen offset:{imm} {ST}
        """)

    def epi_common():
        stamp(e, 2, cfg)
        e(f"""
        s_lshl_b32 s60, {sQD}, 1
        s_lshl_b32 s61, {sMT}, 4
        s_lshl_b32 s4, {sI}, 3
        s_add_u32 s61, s61, s4
        s_lshl_b32 s62, s50, 1
        s_add_u32 s62, s62, {sJ}
        s_lshl_b32 s62, s62, 10
        s_lshl_b32 s63, s51, 1
        s_add_u32 s63, s63, {sJ}
        s_lshl_b32 s63, s63, 10
        """)
        for m in range(2):
            blockbase(m, "s4", A2_KB, "s62")
            relu_store(acc(3, 0, m), acc(3, 1, m), "s4", 0)

    def phi4(a, P):
        e(f"""
        v_pk_mul_f32 {vr(P,2)}, {vr(a,2)}, s[64:65]
        v_pk_mul_f32 {vr(P+2,2)}, {vr(a+2,2)}, s[64:65]
        v_exp_f32_e64 v{P}, v{P} clamp
        v_max_f32 v{a}, s66, v{a}
        v_exp_f32_e64 v{P+1}, v{P+1} clamp
        v_max_f32 v{a+1}, s66, v{a+1}
        v_exp_f32_e64 v{P+2}, v{P+2} clamp
        v_max_f32 v{a+2}, s66, v{a+2}
        v_exp_f32_e64 v{P+3}, v{P+3} clamp
        v_max_f32 v{a+3}, s66, v{a+3}
        v_pk_add_f32 {vr(a,2)}, {vr(a,2)}, {vr(P,2)}
        v_pk_add_f32 {vr(a+2,2)}, {vr(a+2,2)}, {vr(P+2,2)}
        """)

    def pack8(dst, a0, a1):
        e(f"""
        v_cvt_pk_bf16_f32 v{dst}, v{a0}, v{a0+1}
        v_cvt_pk_bf16_f32 v{dst+1}, v{a0+2}, v{a0+3}
        v_cvt_pk_bf16_f32 v{dst+2}, v{a1}, v{a1+1}
        v_cvt_pk_bf16_f32 v{dst+3}, v{a1+2}, v{a1+3}
        """)

    loop(0)
    epi_common()
    e(f"""
    s_mov_b32 s64, {LOG2E}
    s_mov_b32 s65, {LOG2E}
    s_mov_b32 s66, {EPS}
    s_lshl_b32 s67, {sIDX}, 1
    s_add_u32 s67, s67, {sJ}
    s_lshl_b32 s5, s67, 10
    s_add_u32 s5, s5, {WS_PQ}
    """)
    P = T + 16
    for m in range(8):
        phi4(acc(0, 0, m), P); phi4(acc(0, 1, m), P + 4)
        blockbase(m, "s4", 32, "s5")
        r = tq()
        pack8(r, acc(0, 0, m), acc(0, 1, m))
        e(f"buffer_store_dwordx4 {vr(r)}, v{vL16}, {SW}, s4 offen {ST}")
    KV = acc(0, 0, 0)
    Z = KV + 16; ONES = KV + 24
    for i in range(4): e(f"v_mov_b32 v{ONES+i}, 0x3f803f80")
    for u in range(4):
        for t in range(2):
            phi4(acc(1, t, 2 * u), P); phi4(acc(1, t, 2 * u + 1), P + 4)
            pack8(acc(1, t, 2 * u), acc(1, t, 2 * u), acc(1, t, 2 * u + 1))
        for t in range(2):
            pack8(acc(2, t, 2 * u), acc(2, t, 2 * u), acc(2, t, 2 * u + 1))
        e("s_nop 1")
        for td in range(2):
            for te in range(2):
                d = vr(KV + (td * 2 + te) * 4)
                e(mfma(d, vr(acc(1, td, 2 * u)), vr(acc(2, te, 2 * u)), None if u else "0"))
            d = vr(Z + td * 4)
            e(mfma(d, vr(acc(1, td, 2 * u)), vr(ONES), None if u else "0"))
    e(f"""
    s_mul_i32 s4, {sJ}, 6144
    s_add_u32 s4, s4, {SPARE}
    v_add_u32 v{T}, s4, v{vL16}
    s_nop 7
    s_cmp_eq_u32 {sI}, 0
    s_cbranch_scc1 L1_q_rd
    """)
    for i in range(6): e(f"ds_write_b128 v{T}, {vr(KV+i*4)} offset:{i*1024}")
    e(f"""
    s_waitcnt vmcnt({10 + XT}) lgkmcnt(0)
    s_barrier
    s_branch L1_gate
    L1_q_rd:
    s_barrier
    """)
    R = KV + 32
    for i in range(6): e(f"ds_read_b128 {vr(R+i*4)}, v{T} offset:{i*1024}")
    e(f"""
    s_lshl_b32 s4, s67, 3
    s_add_u32 s4, s4, {sMT}
    s_lshl_b32 s4, s4, 12
    s_add_u32 s4, s4, {WS_KVP}
    s_lshl_b32 s5, s67, 10
    s_lshl_b32 s6, {sMT}, 6
    s_add_u32 s5, s5, s6
    s_add_u32 s5, s5, {WS_ZP}
    v_and_b32 v{T+1}, 48, v{vL}
    s_waitcnt lgkmcnt(0)
    """)
    for i in range(12): e(f"v_pk_add_f32 {vr(KV+i*2,2)}, {vr(KV+i*2,2)}, {vr(R+i*2,2)}")
    for i in range(4): e(f"buffer_store_dwordx4 {vr(KV+i*4)}, v{vL16}, {SW}, s4 offen offset:{i*1024} {ST}")
    e(f"""
    s_mov_b64 s[6:7], exec
    s_mov_b32 exec_lo, 0x00010001
    s_mov_b32 exec_hi, 0x00010001
    buffer_store_dwordx4 {vr(Z)}, v{T+1}, {SW}, s5 offen {ST}
    buffer_store_dwordx4 {vr(Z+4)}, v{T+1}, {SW}, s5 offen offset:512 {ST}
    s_mov_b64 exec, s[6:7]
    s_waitcnt vmcnt({16 + XT})
    s_branch L1_gate
    """)
    loop(1)
    epi_common()
    for m in range(8):
        blockbase(m, "s4", A2_KB, "s63")
        relu_store(acc(0, 0, m), acc(0, 1, m), "s4", 0)
        relu_store(acc(1, 0, m), acc(1, 1, m), "s4", 2048)
        e("s_add_u32 s5, s4, 4096")
        relu_store(acc(2, 0, m), acc(2, 1, m), "s5", 0)
    G0 = ACC + 64
    e(f"s_waitcnt vmcnt({26 + XT})")
    e("L1_gate:")
    stamp(e, 3, cfg)
    for i in range(32): e(f"v_accvgpr_read_b32 v{G0+i}, a{GX+i}")
    e(f"v_mov_b32 v{G0+32}, 0")
    e(f"v_mov_b32 v{G0+33}, 0")
    for i in range(16): e(f"v_dot2c_f32_bf16 v{G0+32+(i&1)}, v{G0+i}, v{G0+16+i}")
    g = G0 + 32
    e(f"""
    s_nop 2
    v_add_f32 v{g}, v{g}, v{g+1}
    s_nop 1
    v_add_f32_dpp v{g}, v{g}, v{g} quad_perm:[1,0,3,2] row_mask:0xf bank_mask:0xf
    s_nop 1
    v_add_f32_dpp v{g}, v{g}, v{g} quad_perm:[2,3,0,1] row_mask:0xf bank_mask:0xf
    s_nop 1
    v_add_f32_dpp v{g}, v{g}, v{g} row_half_mirror row_mask:0xf bank_mask:0xf
    s_nop 1
    v_add_f32_dpp v{g}, v{g}, v{g} row_mirror row_mask:0xf bank_mask:0xf
    s_nop 1
    v_add_f32_dpp v{g}, v{g}, v{g} row_bcast:15 row_mask:0xa bank_mask:0xf
    v_mul_f32 v{g}, 0xbfb8aa3b, v{g}
    v_exp_f32 v{g}, v{g}
    v_lshrrev_b32 v{g+1}, 5, v{vL}
    v_add_f32 v{g}, 1.0, v{g}
    v_rcp_f32 v{g}, v{g}
    v_lshlrev_b32 v{g+1}, 2, v{g+1}
    s_lshl_b32 s4, s2, 2
    s_add_u32 s4, s4, {sW}
    s_lshl_b32 s5, s4, 3
    s_add_u32 s5, s5, {WS_G}
    s_mov_b32 exec_lo, 0x80000000
    s_mov_b32 exec_hi, 0x80000000
    buffer_store_dword v{g}, v{g+1}, {SW}, s5 offen {ST}
    s_mov_b64 exec, 1
    v_mov_b32 v{g+2}, 0
    s_lshl_b32 s5, s2, 7
    s_lshl_b32 s6, {sW}, 2
    s_add_u32 s5, s5, s6
    s_add_u32 s6, s5, {WS_FLAG}
    s_add_u32 s5, s5, {WS_CNT}
    buffer_store_dword v{g+2}, v{g+2}, {SW}, s6 offen {ST}
    buffer_store_dword v{g+2}, v{g+2}, {SW}, s5 offen {ST}
    s_mov_b64 exec, -1
    """)
    if cfg.get("stamps"):
        stamp(e, 4, cfg)
        e("s_waitcnt vmcnt(0)")
        stamp(e, 5, cfg)
        stamp_flush(e, cfg, 8, 0, SW, "L1_st")
        e(f"""
        v_lshlrev_b32 v1, 2, v0
        v_cmp_gt_u32 vcc, 8, v0
        s_and_saveexec_b64 s[68:69], vcc
        s_cbranch_execz L1_st2
        buffer_store_dword a225, v1, {SW}, s3 offen offset:32
        L1_st2:
        """)
    e("L1_end:")
    e("s_endpgm")
    return K, e.text(), dict(vgpr=512, accum=256, sgpr=102)


class VQ:
    def __init__(self, init=()):
        self.q = list(init)
    def op(self, tag): self.q.append(tag)
    def need(self, *tags):
        last = max((i for i, t in enumerate(self.q) if t in tags), default=-1)
        n = len(self.q) - 1 - last
        self.q = self.q[last + 1:]
        assert n <= 63
        return n


def gen_k2(cfg):
    e = Em()
    K = "gm2_kernel"
    SW, SB, SO, SB2 = "s[8:11]", "s[12:15]", "s[16:19]", "s[20:23]"
    sW, sRB, sNB, sKH, sI, sJ = "s24", "s25", "s26", "s27", "s28", "s29"
    sA, sB, sLds, sLds2, sIt, sPart = "s30", "s31", "s32", "s33", "s34", "s35"
    sA2, sB2 = "s36", "s37"
    vL, vL16, vA2 = 1, 2, 3
    vB = 4
    rA, rB = 8, 10
    vFl, vOne, vZero = 14, 15, 16
    vG = 20
    T = 24
    ACC = 48
    def acc(L, t, m): return ACC + ((L * 2 + t) * 4 + m) * 4
    def afr(buf, m, ks): return buf * 32 + (m * 2 + ks) * 4
    def bfr(buf, L, t, ks): return 64 + buf * 32 + ((L * 2 + t) * 2 + ks) * 4
    SPARE = 131072

    e(f"""
    s_cmp_ge_u32 s2, 256
    s_cbranch_scc1 L2_end
    """)
    stamp(e, 0, cfg)
    e(f"""
    s_load_dwordx2 s[40:41], s[0:1], 16
    s_load_dwordx2 s[42:43], s[0:1], 40
    s_load_dwordx2 s[44:45], s[0:1], 56
    s_load_dwordx2 s[46:47], s[0:1], 72
    v_lshrrev_b32 v{T}, 6, v0
    v_and_b32 v{vL}, 63, v0
    v_readfirstlane_b32 {sW}, v{T}
    v_lshlrev_b32 v{vL16}, 4, v{vL}
    s_and_b32 s3, s2, 7
    s_lshr_b32 s4, s2, 3
    """)
    e(f"""
    s_and_b32 {sKH}, s3, 1
    s_lshr_b32 s5, s3, 1
    s_and_b32 s5, s5, 1
    s_lshl_b32 s5, s5, 3
    s_and_b32 s6, s4, 7
    s_add_u32 {sRB}, s5, s6
    s_lshr_b32 s5, s3, 2
    s_lshl_b32 s5, s5, 2
    s_lshr_b32 s6, s4, 3
    s_add_u32 {sNB}, s5, s6
    s_xor_b32 {sPart}, s2, 1
    s_lshr_b32 {sI}, {sW}, 1
    s_and_b32 {sJ}, {sW}, 1
    s_lshl_b32 {sLds}, {sW}, 12
    s_lshl_b32 {sLds2}, {sW}, 11
    v_add_u32 v{vA2}, {A2_KB*1024 - 2048}, v{vL16}
    """)
    e(f"""
    s_lshl_b32 s4, {sRB}, 3
    s_lshl_b32 s5, {sW}, 1
    s_add_u32 s4, s4, s5
    s_mul_i32 s4, s4, {A2_KB*1024}
    s_add_u32 {sA2}, s4, {112*1024}
    s_mul_i32 s5, {sKH}, {56*1024}
    s_add_u32 {sA}, s4, s5
    """)
    e(f"""
    s_mul_i32 s4, {sKH}, 1792
    s_lshl_b32 s5, {sJ}, 5
    s_add_u32 s4, s4, s5
    s_lshl_b32 s4, s4, 11
    s_xor_b32 s5, {sKH}, {sI}
    s_lshl_b32 s6, {sNB}, 1
    s_add_u32 s5, s5, s6
    s_lshl_b32 s5, s5, 7
    s_add_u32 {sB}, s4, s5
    s_add_u32 s50, s6, {sKH}
    s_lshl_b32 s50, s50, 7
    s_lshl_b32 s4, {sW}, 15
    s_add_u32 {sB2}, s4, s50
    """)
    e(f"""
    v_lshrrev_b32 v{T}, 3, v{vL}
    v_lshrrev_b32 v{T+1}, 4, v{vL}
    v_and_b32 v{T+2}, 7, v{vL}
    v_lshlrev_b32 v{T+3}, 1, v{T+1}
    v_xor_b32 v{T+3}, v{T+3}, v{T+2}
    v_lshlrev_b32 v{T+3}, 4, v{T+3}
    v_lshl_add_u32 v{vB}, v{T}, 11, v{T+3}
    v_add_u32 v{vB+1}, {16384-1024}, v{vB}
    v_add_u32 v{vB+2}, {2*(16384-1024)}, v{vB}
    v_add_u32 v{vB+3}, {3*(16384-1024)}, v{vB}
    s_waitcnt lgkmcnt(0)
    s_mov_b32 s8, s46
    s_mov_b32 s9, s47
    s_mov_b32 s10, {WS_SIZE}
    s_mov_b32 s11, 0x20000
    s_mov_b32 s12, s42
    s_mov_b32 s13, s43
    s_mov_b32 s14, {3584*2048}
    s_mov_b32 s15, 0x20000
    s_mov_b32 s16, s44
    s_mov_b32 s17, s45
    s_mov_b32 s18, {2048*2048}
    s_mov_b32 s19, 0x20000
    s_mov_b32 s20, s40
    s_mov_b32 s21, s41
    s_mov_b32 s22, {1024*2048}
    s_mov_b32 s23, 0x20000
    """)
    stamp(e, 1, cfg, 2)
    vq = VQ()
    KP = 176
    ZPv = 208; PQv = 216
    e(f"""
    s_and_b32 s51, s2, 7
    s_lshr_b32 s52, s2, 3
    s_lshl_b32 s4, s52, 15
    s_lshl_b32 s5, {sW}, 10
    s_add_u32 s4, s4, s5
    s_add_u32 s4, s4, {WS_KVP}
    """)
    for p in range(8):
        e(f"buffer_load_dwordx4 {vr(KP+p*4)}, v{vL16}, {SW}, s4 offen")
        vq.op("o")
        if p < 7: e("s_add_u32 s4, s4, 4096")
    e(f"""
    v_lshlrev_b32 v{T+4}, 6, v{T+2}
    v_lshl_add_u32 v{T+4}, v{T+1}, 4, v{T+4}
    s_lshl_b32 s4, s52, 10
    s_add_u32 s4, s4, {WS_ZP}
    buffer_load_dwordx4 {vr(ZPv)}, v{T+4}, {SW}, s4 offen
    buffer_load_dwordx4 {vr(ZPv+4)}, v{T+4}, {SW}, s4 offen offset:512
    s_lshl_b32 s53, s51, 4
    s_lshl_b32 s5, {sW}, 2
    s_add_u32 s53, s53, s5
    s_lshl_b32 s4, s53, 5
    s_add_u32 s4, s4, s52
    s_lshl_b32 s4, s4, 10
    s_add_u32 s4, s4, {WS_PQ}
    """)
    vq.op("o"); vq.op("o")
    for m in range(4):
        e(f"buffer_load_dwordx4 {vr(PQv+m*4)}, v{vL16}, {SW}, s4 offen")
        vq.op("o")
        if m < 3: e("s_add_u32 s4, s4, 32768")

    stamp(e, 2, cfg, 2)
    def dmaA(ring, ph):
        s = sA if ph == 1 else sA2
        fl = "" if ph == 1 else "sc1 "
        r = [f"s_add_u32 m0, {sLds}, {ring*32768}"]
        r += [f"buffer_load_dwordx4 v{vL16 if q < 2 else vA2}, {SW}, {s} offen offset:{q*1024} {fl}lds" for q in range(4)]
        r += [f"s_add_u32 {s}, {s}, 2048"]
        return r

    def dmaB(ring, ph):
        if ph == 1:
            r = [f"s_add_u32 m0, {sLds}, {ring*32768 + 16384}"]
            r += [f"buffer_load_dwordx4 v{vB+q}, {SB}, {sB} offen offset:{q*1024} {cfg.get('pb2','')} lds" for q in range(4)]
            r += [f"s_add_u32 {sB}, {sB}, {64*2048}"]
        else:
            r = [f"s_add_u32 m0, {sLds2}, {ring*32768 + 16384}"]
            r += [f"buffer_load_dwordx4 v{vB+q}, {SB2}, {sB2} offen offset:{q*1024} {cfg.get('pb2','')} lds" for q in range(2)]
            r += [f"s_add_u32 {sB2}, {sB2}, {64*2048}"]
        return r

    for t in range(4):
        for g in (dmaB(t, 1), dmaA(t, 1)):
            e(g[0]); e("s_nop 0")
            for x in g[1:]:
                e(x)
                if x.startswith("buffer"): vq.op(("s", t))
    stamp(e, 3, cfg, 2)
    e(f"""
    v_and_b32 v{T+5}, 15, v{vL}
    v_lshlrev_b32 v{T+6}, 2, v{T+5}
    s_lshl_b32 s4, {sRB}, 9
    s_lshl_b32 s5, {sI}, 8
    s_add_u32 s4, s4, s5
    s_add_u32 s4, s4, {WS_G}
    """)
    for m in range(4):
        e(f"buffer_load_dword v{vG+m}, v{T+6}, {SW}, s4 offen offset:{m*64}")
        vq.op("g")
    e(f"""
    s_lshl_b32 s4, {sI}, 13
    v_add_u32 v{rA}, s4, v{vL16}
    v_add_u32 v{rA+1}, 0x10000, v{rA}
    v_lshrrev_b32 v{T+3}, 2, v{vL}
    v_lshlrev_b32 v{T+3}, 7, v{T+3}
    v_bfe_u32 v{T+4}, v{vL}, 3, 2
    s_lshl_b32 s4, {sJ}, 1
    v_xor_b32 v{T+4}, s4, v{T+4}
    v_lshl_add_u32 v{T+3}, v{T+4}, 5, v{T+3}
    v_and_b32 v{T+4}, 3, v{vL}
    v_lshl_add_u32 v{T+3}, v{T+4}, 3, v{T+3}
    v_add_u32 v{rB}, 16384, v{T+3}
    v_xor_b32 v{rB+1}, 32, v{rB}
    v_add_u32 v{rB+2}, 0x10000, v{rB}
    v_add_u32 v{rB+3}, 0x10000, v{rB+1}
    v_mov_b32 v{vOne}, 1
    v_mov_b32 v{vZero}, 0
    """)
    for i in range(96): e(f"v_mov_b32 v{ACC+i}, 0")
    stamp(e, 4, cfg, 2)
    e(f"s_waitcnt vmcnt({vq.need('o')})")
    stamp(e, 1, cfg); stamp(e, 5, cfg, 2)
    for stp in (4, 2, 1):
        for p in range(stp):
            for h in range(2):
                a = KP + p * 4 + h * 2
                e(f"v_pk_add_f32 {vr(a,2)}, {vr(a,2)}, {vr(a+stp*4,2)}")
    e(f"""
    v_cvt_pk_bf16_f32 v{KP}, v{KP}, v{KP+1}
    v_cvt_pk_bf16_f32 v{KP+1}, v{KP+2}, v{KP+3}
    s_lshl_b32 s4, {sJ}, 10
    s_lshl_b32 s5, {sI}, 3
    s_add_u32 s4, s4, s5
    s_add_u32 s4, s4, {SPARE}
    v_add_u32 v{T}, s4, v{vL16}
    v_add_u32 v{T+1}, {SPARE}, v{vL16}
    ds_write_b64 v{T}, {vr(KP,2)}
    """)
    for dpp in ("quad_perm:[1,0,3,2]", "quad_perm:[2,3,0,1]", "row_half_mirror"):
        for i in range(8):
            e(f"v_add_f32_dpp v{ZPv+i}, v{ZPv+i}, v{ZPv+i} {dpp} row_mask:0xf bank_mask:0xf")
    for i in range(4):
        e(f"v_cvt_pk_bf16_f32 v{ZPv+i}, v{ZPv+2*i}, v{ZPv+2*i+1}")
    e(f"""
    s_waitcnt vmcnt({vq.need(('s',0))}) lgkmcnt(0)
    s_barrier
    ds_read_b128 {vr(KP+4)}, v{T+1}
    ds_read_b128 {vr(KP+8)}, v{T+1} offset:1024
    """)

    def rdA(ring, buf):
        return [f"ds_read_b128 {ar(afr(buf, m, ks))}, v{rA+(ring>>1)} offset:{(ring&1)*32768 + m*2048 + ks*1024}"
                for m in range(4) for ks in range(2)]

    def rdB(ring, buf, ph):
        return [f"ds_read_b64_tr_b16 {ar(bfr(buf, L, t, ks)+hf*2, 2)}, v{rB+t+2*(ring>>1)} offset:{(ring&1)*32768 + L*8192 + ks*4096 + hf*2048}"
                for L in range(2 if ph == 1 else 1) for t in range(2) for ks in range(2) for hf in range(2)]

    rd0 = rdA(0, 0) + rdB(0, 0, 1)
    for x in rd0[:12]: e(x)
    e("s_waitcnt lgkmcnt(12)")
    O = 144
    DEN = KP + 12
    for m in range(4):
        e(mfma(vr(DEN + m * 4), vr(ZPv), vr(PQv + m * 4), "0"))
        e(mfma(vr(O + m * 8), vr(KP + 4), vr(PQv + m * 4), "0"))
        e(mfma(vr(O + m * 8 + 4), vr(KP + 8), vr(PQv + m * 4), "0"))
    for x in rd0[12:]: e(x)
    e(f"""
    s_mul_i32 s4, s53, {A2_KB*1024}
    s_add_u32 s5, s52, 112
    s_lshl_b32 s5, s5, 10
    s_add_u32 s4, s4, s5
    """)
    for m in range(4):
        e(f"v_add_f32 v{DEN+m*4}, {EPS:#x}, v{DEN+m*4}")
    for m in range(4):
        e(f"v_rcp_f32 v{DEN+m*4}, v{DEN+m*4}")
    for m in range(4):
        for h in range(4):
            a = O + m * 8 + h * 2
            e(f"v_pk_mul_f32 {vr(a,2)}, {vr(a,2)}, {vr(DEN+m*4,2)} op_sel_hi:[1,0]")
        for h in range(4):
            e(f"v_cvt_pk_bf16_f32 v{PQv+m*4+h}, v{O+m*8+h*2}, v{O+m*8+h*2+1}")
        e(f"buffer_store_dwordx4 {vr(PQv+m*4)}, v{vL16}, {SW}, s4 offen sc1")
        vq.op("ost")
        if m < 3: e(f"s_add_u32 s4, s4, {A2_KB*1024}")
    e(f"""
    s_mov_b32 {sIt}, 0
    s_lshl_b32 s54, s51, 7
    s_add_u32 s54, s54, {WS_CNT}
    s_lshr_b32 s55, {sRB}, 1
    s_lshl_b32 s55, s55, 7
    s_add_u32 s55, s55, {WS_CNT}
    s_lshl_b32 s4, {sW}, 2
    s_lshl_b32 s56, s2, 7
    s_add_u32 s56, s56, s4
    s_add_u32 s56, s56, {WS_FLAG}
    s_lshl_b32 s57, {sPart}, 7
    s_add_u32 s57, s57, s4
    s_add_u32 s57, s57, {WS_FLAG}
    s_lshl_b32 s4, {sW}, 13
    s_lshl_b32 s58, s2, 15
    s_add_u32 s58, s58, s4
    s_add_u32 s58, s58, {WS_XCH}
    s_lshl_b32 s59, {sPart}, 15
    s_add_u32 s59, s59, s4
    s_add_u32 s59, s59, {WS_XCH}
    s_waitcnt vmcnt({vq.need(('s',1))}) lgkmcnt(0)
    s_barrier
    """)
    stamp(e, 2, cfg); stamp(e, 6, cfg, 2); stamp(e, 7, cfg, 2)

    def step(s, vq, extra=(), tail=(), fixedN=None):
        ph = 1 if s < 28 else 2
        buf = s & 1
        mf = []
        for L in range(2 if ph == 1 else 1):
            for t in range(2):
                for m in range(4):
                    for ks in range(2):
                        mf.append(mfma(vr(acc(L if ph == 1 else 2, t, m)), ar(bfr(buf, L, t, ks)), ar(afr(buf, m, ks))))
        N = len(mf)
        it = []
        vm = []
        dpos = []
        if s + 4 < 44:
            dph = 1 if s + 4 < 28 else 2
            gB, gA = dmaB(s & 3, dph), dmaA(s & 3, dph)
            nd = len(gB) + len(gA) - 4
            dpos = [1 + (d * (N - 1)) // nd for d in range(nd)]
            k = 0
            for g in (gB, gA):
                it.append((dpos[k] - 1, g[0]))
                for x in g[1:-1]:
                    it.append((dpos[k], x)); k += 1
                it.append((min(N - 1, dpos[k - 1] + 1), g[-1]))
        if s + 1 < 44:
            rph = 1 if s + 1 < 28 else 2
            ra, rb = rdA((s + 1) & 3, 1 - buf), rdB((s + 1) & 3, 1 - buf, rph)
            rd = []
            k = 0
            for i in range(len(ra)):
                n = (len(rb) * (i + 1)) // len(ra)
                rd += rb[k:n]; k = n
                rd.append(ra[i])
            hi = N - 4 if ph == 1 else N - 2
            free = [p for p in range(0, hi) if p not in dpos]
            for i, x in enumerate(rd): it.append((free[(i * len(free)) // len(rd)], x))
        it += list(extra)
        body = place(mf, it)
        for x in body:
            tag = None
            if isinstance(x, tuple): x, tag = x
            e(x)
            if x.startswith("buffer"):
                vq.op(tag if tag else ("s", s + 4))
        if s + 1 < 44:
            if s + 2 < 44:
                n = vq.need(("s", s + 2))
                if fixedN is not None:
                    assert n >= fixedN, (s, n)
                    n = fixedN
                e(f"s_waitcnt vmcnt({n}) lgkmcnt(0)")
                e("s_barrier")
            else:
                e("s_waitcnt lgkmcnt(0)")
        for x in tail: e(x)

    e(".p2align 3")
    e("L2_loop:")
    for s in range(4):
        tail = []
        ex = []
        if s == 3:
            tail = [f"s_add_u32 s4, {sIt}, {sW}", "s_cmp_eq_u32 s4, 0", "s_cbranch_scc0 L2_nosig",
                    "s_mov_b64 exec, 1", f"buffer_atomic_add v{vOne}, off, {SW}, s54", "s_mov_b64 exec, -1", "L2_nosig:",
                    f"s_add_u32 {sIt}, {sIt}, 1", f"s_cmp_lt_u32 {sIt}, 6", "s_cbranch_scc1 L2_loop"]
        if s == 0:
            ex = [(0, (f"buffer_load_dword v{vFl}, off, {SW}, s55 sc1", "cnt"))]
        step(s, vq, ex, tail, fixedN=16)
    assert "ost" not in vq.q and "cnt" not in vq.q
    vq = VQ([("s", 26)] * 8 + [("s", 27)] * 8)
    stamp(e, 3, cfg)
    e(f"""
    v_readfirstlane_b32 s4, v{vFl}
    s_nop 0
    s_cmp_ge_u32 s4, 32
    s_cbranch_scc1 L2_oready
    s_mov_b32 s5, 0
    L2_ospin:
    s_add_u32 s5, s5, 1
    s_cmp_gt_u32 s5, 0x40000
    s_cbranch_scc1 L2_oready
    s_sleep 2
    buffer_load_dword v{vFl}, off, {SW}, s55 sc1
    s_waitcnt vmcnt(0)
    v_readfirstlane_b32 s4, v{vFl}
    s_nop 0
    s_cmp_ge_u32 s4, 32
    s_cbranch_scc0 L2_ospin
    L2_oready:
    """)
    FS, FP, FC = cfg.get("fs", 31), cfg.get("fp", 35), cfg.get("fc", 38)
    for s in range(24, 44):
        ex = []; tail = []
        if s in (28, 29):
            t = s - 28
            for m in range(4):
                ex.append((8 + 2 * m if s == 28 else 2 + 3 * m,
                           (f"buffer_store_dwordx4 {vr(acc(1, t, m))}, v{vL16}, {SW}, s58 offen offset:{m*1024} sc1", "xst")))
            if s == 28: tail = ["s_add_u32 s58, s58, 4096"]
        if s == 28: stamp(e, 4, cfg)
        if s == FS + 1:
            assert "xst" not in vq.q
            ex += [(0, ["s_mov_b64 exec, 1", (f"buffer_store_dword v{vOne}, off, {SW}, s56 sc1", "fl"), "s_mov_b64 exec, -1", "s_nop 3"])]
        if s == FP:
            ex += [(0, (f"buffer_load_dword v{vFl}, off, {SW}, s57 sc1", "pf"))]
        if s == FC:
            assert "pf" not in vq.q
            e(f"""
            v_readfirstlane_b32 s4, v{vFl}
            s_nop 0
            s_cmp_eq_u32 s4, 1
            s_cbranch_scc1 L2_pready
            s_mov_b32 s5, 0
            L2_pspin:
            s_add_u32 s5, s5, 1
            s_cmp_gt_u32 s5, 0x40000
            s_cbranch_scc1 L2_pready
            s_sleep 1
            buffer_load_dword v{vFl}, off, {SW}, s57 sc1
            s_waitcnt vmcnt(0)
            v_readfirstlane_b32 s4, v{vFl}
            s_nop 0
            s_cmp_eq_u32 s4, 1
            s_cbranch_scc0 L2_pspin
            L2_pready:
            """)
        if s in (FC, FC + 1):
            t = s - FC
            for m in range(4):
                ex.append((2 + 3 * m, (f"buffer_load_dwordx4 {vr(acc(3, t, m))}, v{vL16}, {SW}, s59 offen offset:{m*1024} sc1", "rx")))
            if s == FC: tail = ["s_add_u32 s59, s59, 4096"]
        step(s, vq, ex, tail)
    stamp(e, 5, cfg)
    e(f"""
    v_and_b32 v{T}, 15, v{vL}
    v_bfe_u32 v{T+1}, v{vL}, 4, 1
    v_lshrrev_b32 v{T+2}, 5, v{vL}
    v_lshlrev_b32 v{T}, 11, v{T}
    v_lshl_add_u32 v{T}, v{T+1}, 5, v{T}
    v_lshl_add_u32 v{T}, v{T+2}, 4, v{T}
    s_lshl_b32 s4, {sRB}, 18
    s_lshl_b32 s5, {sI}, 17
    s_add_u32 s4, s4, s5
    s_lshl_b32 s5, {sJ}, 6
    s_add_u32 s4, s4, s5
    s_add_u32 s4, s4, s50
    s_waitcnt vmcnt(0)
    """)
    for m in range(4):
        gg = T + 4; og = T + 6
        e(f"v_mov_b32 v{gg}, v{vG+m}")
        e(f"v_sub_f32 v{og}, 1.0, v{vG+m}")
        for t in range(2):
            for h in range(2):
                b = acc(0, t, m) + 2 * h; r = acc(3, t, m) + 2 * h; a = acc(2, t, m) + 2 * h
                e(f"v_pk_add_f32 {vr(b,2)}, {vr(b,2)}, {vr(r,2)}")
                e(f"v_pk_mul_f32 {vr(b,2)}, {vr(b,2)}, {vr(og,2)} op_sel_hi:[1,0]")
                e(f"v_pk_fma_f32 {vr(b,2)}, {vr(a,2)}, {vr(gg,2)}, {vr(b,2)} op_sel_hi:[1,0,1]")
        r = T + 8 + 4 * m
        for t in range(2):
            for h in range(2):
                e(f"v_cvt_pk_bf16_f32 v{r+2*t+h}, v{acc(0,t,m)+2*h}, v{acc(0,t,m)+2*h+1}")
        e(f"""
        s_nop 1
        v_permlane16_swap_b32 v{r}, v{r+2}
        v_permlane16_swap_b32 v{r+1}, v{r+3}
        buffer_store_dwordx4 {vr(r)}, v{T}, {SO}, s4 offen
        """)
        if m < 3: e(f"s_add_u32 s4, s4, {16*2048}")
    if cfg.get("stamps"):
        stamp(e, 6, cfg)
        e("s_waitcnt vmcnt(0)")
        stamp(e, 7, cfg)
        stamp_flush(e, cfg, 8, 1, SW, "L2_st")
    e("L2_end:")
    e("s_endpgm")
    return K, e.text(), dict(vgpr=384, accum=256, sgpr=96)


HEAD = """; Kernarg layout for this problem (80 bytes, ptrs only, base s[0:1]):
"""


def build(cfg=None):
    cfg = cfg or {}
    ks = [gen_k1(cfg), gen_k2(cfg)]
    s = HEAD
    order = cfg.get("order", "12")
    if "0" in order:
        ks.append(("gm0_kernel", "  s_endpgm\n", dict(vgpr=8, accum=8, sgpr=16)))
    for c in order:
        s += f"; @launch kernel=gm{c}_kernel grid=(256,1,1) block=(256,1,1) lds={163840 if c != '0' else 0}\n"
    s += '.amdgcn_target "amdgcn-amd-amdhsa--gfx950"\n.text\n'
    for k, body, d in ks:
        s += f".globl {k}\n.p2align 8\n.type {k},@function\n{k}:\n" + body
    s += '.section .rodata,"a"\n'
    for k, body, d in ks:
        s += f""".p2align 6
.amdhsa_kernel {k}
  .amdhsa_next_free_vgpr {d['vgpr']}
  .amdhsa_next_free_sgpr {d['sgpr']}
  .amdhsa_accum_offset {d['accum']}
  .amdhsa_group_segment_fixed_size 0
  .amdhsa_kernarg_size 80
  .amdhsa_user_sgpr_count 2
  .amdhsa_user_sgpr_kernarg_segment_ptr 1
  .amdhsa_system_sgpr_workgroup_id_x 1
  .amdhsa_float_denorm_mode_32 3
.end_amdhsa_kernel
"""
    return s


if __name__ == "__main__":
    out = sys.argv[1] if len(sys.argv) > 1 else f"cdna_kernels/{NAME}.s"
    cfg = {}
    for a in sys.argv[2:]:
        k, v = a.split("=")
        cfg[k] = int(v) if (v.lstrip("-").isdigit() and k != "order") else v
    open(out, "w").write(build(cfg))
    print("wrote", out)
```

```python
import sys

NAME = "gated_mix__linear_attn_block__dense_activation_relu__prompt"

A2_KB = 144
WS_A2 = 0
WS_PQ = 0x1200000
WS_KVP = 0x1600000
WS_ZP = 0x1700000
WS_G = 0x1710000
WS_FLAG = 0x1720000
WS_CNT = 0x1730000
WS_STAMP = 0x1740000
WS_XCH = 0x1800000
WS_SIZE = 0x2000000

LOG2E = 0x3fb8aa3b
EPS = 0x358637bd


class Em:
    def __init__(self):
        self.l = []

    def __call__(self, s):
        for x in s.strip("\n").split("\n"):
            x = x.strip()
            if x:
                self.l.append(x if x.endswith(":") else "  " + x)

    def text(self):
        return "\n".join(self.l) + "\n"


def place(mf, items):
    by = {}
    for p, ins in items:
        by.setdefault(p, []).extend(ins if isinstance(ins, list) else [ins])
    out = list(by.get(-1, []))
    for i, x in enumerate(mf):
        out.append(x)
        out += by.get(i, [])
    assert all(-1 <= p < len(mf) for p in by), (sorted(by), len(mf))
    return out


def vr(b, n=4, c="v"):
    return f"{c}[{b}:{b+n-1}]" if n > 1 else f"{c}{b}"


def ar(b, n=4):
    return vr(b, n, "a")


def mfma(d, a, b, c=None):
    return f"v_mfma_f32_16x16x32_bf16 {d}, {a}, {b}, {d if c is None else c}"


def spread(n, lo, hi, avoid=()):
    free = [p for p in range(lo, hi) if p not in avoid]
    return [free[(i * len(free)) // n] for i in range(n)]


def stamp(e, idx, cfg, mode=1):
    if cfg.get("stamps") and (cfg.get("smode", 1) == mode or idx == 0):
        e(f"s_memrealtime s[{70+2*idx}:{71+2*idx}]")


def stamp_flush(e, cfg, nst, kidx, srd, lab):
    if not cfg.get("stamps"):
        return
    e("s_waitcnt lgkmcnt(0)")
    for i in range(nst):
        e(f"v_mov_b32 v{2+i}, s{70+2*i}")
    e(f"""
    s_lshl_b32 s3, s2, 6
    s_add_u32 s3, s3, {WS_STAMP + kidx*16384}
    v_mov_b32 v1, 0
    v_cmp_eq_u32 vcc, 0, v0
    s_and_saveexec_b64 s[68:69], vcc
    s_cbranch_execz {lab}
    buffer_store_dwordx4 v[2:5], v1, {srd}, s3 offen
    buffer_store_dwordx4 v[6:9], v1, {srd}, s3 offen offset:16
    {lab}:
    s_mov_b64 exec, s[68:69]
    """)


def gen_k1(cfg):
    e = Em()
    K = "gm1_kernel"
    ST = cfg.get("st1", "sc1")
    SA, SB0, SB1, SW = "s[8:11]", "s[12:15]", "s[16:19]", "s[20:23]"
    sW, sMT, sTYPE, sIDX, sSH, sQD = "s24", "s25", "s26", "s27", "s28", "s29"
    sAlo, sAhi, sB0, sB1, sB0st, sB1st, sLds, sIt = "s30", "s31", "s32", "s33", "s34", "s35", "s36", "s37"
    sI, sJ = "s38", "s39"
    vL, vL16 = 1, 2
    vA, vB0, vB1 = 4, 8, 12
    rA, rB = 16, 20
    T = 24
    ACC = 48
    def acc(L, t, m):
        if L == 3:
            return ACC + 192 + (t * 2 + m) * 4
        return ACC + ((L * 2 + t) * 8 + m) * 4
    def afr(buf, m, ks): return buf * 64 + (m * 2 + ks) * 4
    def bfr(L, t, ks): return 128 + ((L * 2 + t) * 2 + ks) * 4
    GX = 192

    SPARE = 131072
    PF = cfg.get("pf", 4)
    LEAD = cfg.get("lead", 3)
    W2 = cfg.get("w2mode", 2)
    W2M = {1: (0x60, 0x60), 2: (0x60, 0), 3: (0x40, 0x40)}[W2]
    XT = 1 if PF == 4 else 0
    sCe = "s87"
    SP, sP, sPst, vP, vD = "s[88:91]", "s92", "s93", 3, 224
    sCls, sPn = "s99", "s98"
    def lines(txt): return [x.strip() for x in txt.strip().split("\n") if x.strip()]

    def dmaA(ldsoff, sreg):
        r = [f"s_add_u32 m0, {sLds}, {ldsoff}"]
        r += [f"buffer_load_dwordx4 v{vA+q}, {SA}, {sreg} offen offset:{q*1024} {cfg.get('pa1','')} lds" for q in range(4)]
        r += [f"s_add_u32 {sreg}, {sreg}, 128"]
        return r

    def dmaB(ldsoff, odd):
        srd, vb, sreg, sst = (SB1, vB1, sB1, sB1st) if odd else (SB0, vB0, sB0, sB0st)
        r = [f"s_add_u32 m0, {sLds}, {ldsoff}"]
        r += [f"buffer_load_dwordx4 v{vb+q}, {srd}, {sreg} offen offset:{q*1024} {cfg.get('pb1','')} lds" for q in range(4)]
        r += [f"s_add_u32 {sreg}, {sreg}, {sst}"]
        return r

    def burst(g):
        e(g[0]); e("s_nop 0")
        for x in g[1:]: e(x)

    def mix(main, fill):
        for i in range(len(main)):
            e(main[i])
            for x in fill[(i * len(fill)) // len(main):((i + 1) * len(fill)) // len(main)]: e(x)

    touch = f"buffer_load_dword a{vD}, v{vP}, {SP}, {sP} offen"
    tadv = f"s_add_u32 {sP}, {sP}, {sPst}"

    T0 = cfg.get("t0", 2)
    def pfsetup():
        e(f"""
        s_bfe_u32 {sCls}, s2, 0x20003
        s_mov_b32 s91, 0x20000
        v_lshlrev_b32 v{vP}, 7, v{vL}
        v_mov_b32 v{T+6}, 0x40000000
        s_cmp_eq_u32 {sI}, 0
        s_cbranch_scc1 L1_pfa
        s_lshl_b32 s5, {sJ}, 1
        s_xor_b32 {sCls}, {sCls}, s5
        s_mov_b32 s88, s46
        s_mov_b32 s89, s47
        s_mov_b32 s90, {3584*2048}
        s_mov_b32 {sPst}, 7168
        s_lshl_b32 s5, s2, 1
        s_add_u32 s5, s5, {sJ}
        s_mul_i32 {sP}, s5, {2*7168}
        s_cmp_eq_u32 {sJ}, 0
        s_mov_b32 {sPn}, {W2M[1]}
        s_cmov_b32 {sPn}, {W2M[0]}
        v_cmp_le_u32 vcc, {sPst}, v{vP}
        s_branch L1_pfd
        L1_pfa:
        s_mov_b32 {sPn}, 31
        s_cmp_eq_u32 {sJ}, 0
        s_cbranch_scc0 L1_pfx
        s_bitcmp0_b32 s2, 0
        s_cselect_b32 s88, s42, s44
        s_cselect_b32 s89, s43, s45
        s_mov_b32 s5, 7168
        s_cmov_b32 s5, 6144
        s_lshl_b32 s90, s5, 10
        s_lshl_b32 {sPst}, s5, 7
        s_lshr_b32 s6, s2, 1
        s_mul_i32 {sP}, s6, s5
        {'' if T0 else tadv}
        v_cmp_le_u32 vcc, s5, v{vP}
        s_branch L1_pfd
        L1_pfx:
        s_mov_b32 s88, s40
        s_mov_b32 s89, s41
        s_mov_b32 s90, {2048*2048}
        s_mov_b32 {sPst}, 256
        s_lshl_b32 {sP}, s2, 14
        s_add_u32 {sP}, {sP}, {128 if T0 else 384}
        v_lshrrev_b32 v{vP}, 1, v{vL}
        v_lshlrev_b32 v{vP}, 11, v{vP}
        v_and_b32 v{T+5}, 1, v{vL}
        v_cmp_lt_u32 vcc, 15, v{vL}
        v_lshl_add_u32 v{vP}, v{T+5}, 7, v{vP}
        L1_pfd:
        s_nop 1
        v_cndmask_b32 v{vP}, v{vP}, v{T+6}, vcc
        """)
    def tpro(n):
        e(f"""
        s_cmp_eq_u32 {sI}, 0
        s_cbranch_scc0 L1_tp{n}
        {touch}
        {tadv}
        L1_tp{n}:
        """)
    e(f"""
    s_cmp_ge_u32 s2, 256
    s_cbranch_scc1 L1_end
    """)
    stamp(e, 0, cfg)
    e(f"""
    s_load_dwordx4 s[40:43], s[0:1], 0
    s_load_dwordx4 s[44:47], s[0:1], 32
    s_load_dwordx2 s[48:49], s[0:1], 72
    s_load_dwordx2 s[94:95], s[0:1], 48
    s_load_dwordx2 s[96:97], s[0:1], 16
    v_lshrrev_b32 v3, 6, v0
    v_and_b32 v{vL}, 63, v0
    v_readfirstlane_b32 {sW}, v3
    v_lshrrev_b32 v{T}, 3, v{vL}
    v_lshrrev_b32 v{T+1}, 4, v{vL}
    v_and_b32 v{T+2}, 7, v{vL}
    v_xor_b32 v{T+3}, v{T+2}, v{T+1}
    v_lshlrev_b32 v{T+4}, 11, v{T}
    v_lshl_add_u32 v{vA}, v{T+3}, 4, v{T+4}
    v_xor_b32 v{vA+1}, 64, v{vA}
    v_add_u32 v{vA+2}, {2*16384 - 2048}, v{vA}
    v_add_u32 v{vA+1}, {16384 - 1024}, v{vA+1}
    v_add_u32 v{vA+3}, {2*16384 - 2048}, v{vA+1}
    s_and_b32 s5, s2, 1
    s_lshl_b32 s5, s5, 2
    s_bfe_u32 s6, s2, 0x20003
    s_add_u32 {sMT}, s5, s6
    s_bfe_u32 {sQD}, s2, 0x20005
    s_lshr_b32 {sI}, {sW}, 1
    s_and_b32 {sJ}, {sW}, 1
    s_lshl_b32 {sLds}, {sW}, 12
    s_xor_b32 s4, {sJ}, {sQD}
    s_lshl_b32 s4, s4, 5
    s_lshl_b32 s5, {sMT}, 8
    s_lshl_b32 s6, {sI}, 7
    s_add_u32 s5, s5, s6
    s_add_u32 s6, s5, s4
    s_lshl_b32 {sAlo}, s6, 11
    s_xor_b32 {sAhi}, {sAlo}, {64 << 11}
    s_mov_b32 s10, {2048*2048}
    s_mov_b32 s11, 0x20000
    s_waitcnt lgkmcnt(0)
    s_mov_b32 s8, s40
    s_mov_b32 s9, s41
    """)
    stamp(e, 1, cfg, 2)
    if PF == 4 and T0 == 1:
        pfsetup(); tpro(0)
    burst(dmaA(SPARE, sAlo))
    if PF == 4 and T0 == 2:
        pfsetup(); tpro(0)
    burst(dmaA(0, sAhi))
    e(f"""
    s_bfe_u32 s3, s2, 0x20001
    s_bfe_u32 {sTYPE}, s2, 0x10005
    s_lshr_b32 s5, s2, 6
    s_lshl_b32 s6, s3, 2
    s_add_u32 {sIDX}, s5, s6
    s_lshr_b32 {sSH}, {sIDX}, 1
    s_mul_i32 s50, {sSH}, 7
    s_and_b32 s51, {sIDX}, 1
    s_mul_i32 s51, s51, 3
    s_add_u32 s51, s51, s50
    s_add_u32 s50, s50, 6
    v_and_b32 v{T+3}, 1, v{T+1}
    v_lshlrev_b32 v{T+3}, 1, v{T+3}
    v_xor_b32 v{T+3}, v{T+3}, v{T+2}
    v_lshlrev_b32 v{T+3}, 4, v{T+3}
    v_xor_b32 v{T+4}, 64, v{T+3}
    s_cmp_eq_u32 {sTYPE}, 0
    s_cselect_b32 s52, {sIDX}, s51
    s_cselect_b32 s53, 16, 1
    s_cselect_b32 s16, s42, s44
    s_cselect_b32 s17, s43, s45
    s_mov_b32 s54, 7168
    s_cmov_b32 s54, 6144
    s_cmp_eq_u32 {sI}, 0
    s_cselect_b32 s4, s50, s52
    s_cselect_b32 s55, 7168, s54
    s_cselect_b32 s12, s44, s16
    s_cselect_b32 s13, s45, s17
    s_lshl_b32 s14, s55, 10
    s_mov_b32 s15, 0x20000
    s_lshl_b32 s7, {sJ}, 5
    s_lshl_b32 s4, s4, 7
    s_mul_i32 s6, s7, s55
    s_add_u32 {sB0}, s4, s6
    s_lshl_b32 {sB0st}, s55, 6
    """)
    def bvoff(vb, sp):
        e(f"""
        s_lshl_b32 s4, {sp}, 3
        s_sub_u32 s4, s4, 1024
        s_lshl_b32 s5, s4, 1
        v_mul_lo_u32 v{T+5}, v{T}, {sp}
        v_add_u32 v{vb}, v{T+5}, v{T+3}
        v_add3_u32 v{vb+1}, v{T+5}, v{T+4}, s4
        v_add_u32 v{vb+2}, s5, v{vb}
        v_add_u32 v{vb+3}, s5, v{vb+1}
        """)
    bvoff(vB0, "s55")
    burst(dmaB(16384, 0))
    e(f"""
    s_add_u32 s4, {sI}, 1
    s_mul_i32 s4, s4, s53
    s_add_u32 s4, s4, s52
    s_lshl_b32 s4, s4, 7
    s_mul_i32 s6, s7, s54
    s_add_u32 {sB1}, s4, s6
    s_lshl_b32 {sB1st}, s54, 6
    s_lshl_b32 s18, s54, 10
    s_mov_b32 s19, 0x20000
    """)
    bvoff(vB1, "s54")
    e(f"""
    v_lshlrev_b32 v{vL16}, 4, v{vL}
    v_and_b32 v{T}, 15, v{vL}
    v_lshrrev_b32 v{T+3}, 1, v{T}
    v_xor_b32 v{T+3}, v{T+3}, v{T+1}
    v_lshlrev_b32 v{T+3}, 4, v{T+3}
    v_lshl_add_u32 v{T+3}, v{T}, 7, v{T+3}
    s_lshl_b32 s4, {sI}, 13
    v_add_u32 v{rA}, s4, v{T+3}
    v_xor_b32 v{rA+1}, 64, v{rA}
    v_add_u32 v{rA+2}, 0x10000, v{rA}
    v_add_u32 v{rA+3}, 0x10000, v{rA+1}
    v_bfe_u32 v{T}, v{vL}, 2, 2
    v_lshl_add_u32 v{T+3}, v{T+1}, 3, v{T}
    v_lshlrev_b32 v{T+3}, 7, v{T+3}
    v_bfe_u32 v{T+4}, v{vL}, 3, 2
    s_lshl_b32 s4, {sJ}, 1
    v_xor_b32 v{T+4}, s4, v{T+4}
    v_lshl_add_u32 v{T+3}, v{T+4}, 5, v{T+3}
    v_and_b32 v{T+4}, 3, v{vL}
    v_lshl_add_u32 v{T+3}, v{T+4}, 3, v{T+3}
    v_add_u32 v{rB}, 16384, v{T+3}
    v_xor_b32 v{rB+1}, 32, v{rB}
    v_add_u32 v{rB+2}, 0x10000, v{rB}
    v_add_u32 v{rB+3}, 0x10000, v{rB+1}
    s_mov_b32 s20, s48
    s_mov_b32 s21, s49
    s_mov_b32 s22, {WS_SIZE}
    s_mov_b32 s23, 0x20000
    """)
    if PF == 4 and not T0: pfsetup()
    stamp(e, 2, cfg, 2)
    mix(dmaB(32768 + 16384, 1) + dmaA(32768, sAlo), [f"v_mov_b32 v{ACC+i}, 0" for i in range(208)])
    if PF == 4: tpro(1)

    def rdA(ring, buf, half):
        r = []
        for mm in range(4):
            for ks in range(2):
                r.append(f"ds_read_b128 {ar(afr(buf, half*4+mm, ks))}, v{rA+ks+2*(ring>>1)} offset:{(ring&1)*32768 + mm*2048}")
        return r

    def rdB(ring, odd):
        r = []
        for li, L in enumerate((1, 2) if odd else (3, 0)):
            for t in range(2):
                for ks in range(2):
                    for hf in range(2):
                        r.append(f"ds_read_b64_tr_b16 {ar(bfr(L, t, ks)+hf*2, 2)}, v{rB+t+2*(ring>>1)} offset:{(ring&1)*32768 + li*8192 + ks*4096 + hf*512}")
        return r

    stamp(e, 3, cfg, 2)
    e(f"""
    v_add_u32 v{T}, 0x20000, v{rA}
    v_add_u32 v{T+1}, 0x20000, v{rA+1}
    s_waitcnt vmcnt(8)
    s_barrier
    """)
    stamp(e, 1, cfg); stamp(e, 4, cfg, 2)
    rd = rdB(0, 0) + [f"ds_read_b128 {ar(afr(0, mm, ks))}, v{T+ks} offset:{mm*2048}" for mm in range(4) for ks in range(2)] + rdA(0, 0, 1)
    for x in rd[:12]: e(x)
    mix(dmaB(2 * 32768 + 16384, 0) + dmaA(2 * 32768, sAhi), rd[12:])
    if LEAD == 3:
        burst(dmaB(3 * 32768 + 16384, 1))
        burst(dmaA(3 * 32768, sAlo))
    stamp(e, 5, cfg, 2)
    e(f"""
    s_mov_b32 {sIt}, 0
    """)
    if PF == 4:
        e(f"""
        s_cmp_eq_u32 {sI}, 0
        s_cbranch_scc0 L1_tp2
        {touch}
        {tadv}
        s_waitcnt vmcnt({8*(LEAD-1) + 2})
        s_branch L1_tp3
        L1_tp2:
        """)
    e(f"""
    s_waitcnt vmcnt({8*(LEAD-1)})
    L1_tp3:
    s_waitcnt lgkmcnt(0)
    s_barrier
    """)
    stamp(e, 6, cfg); stamp(e, 6, cfg, 2)
    e(f"""
    s_cmp_eq_u32 {sTYPE}, 0
    s_cbranch_scc0 L1_loopH
    """)

    def body(typ, last, lab):
        for st in range(2):
            mf = []
            for L, nm in ((3, 2), (0, 8), (1, 8), (2, 8)):
                for t in range(2):
                    for m in range(nm):
                        for ks in range(2):
                            d = vr(acc(L, t, m)); w = ar(bfr(L, t, ks)); x = ar(afr(st, m, ks))
                            mf.append(mfma(d, x, w) if (typ == 0 and L in (1, 2)) else mfma(d, w, x))
            it = []
            for hp in range(2):
                per = 2 * st + hp
                ring = (per + 1) & 3
                base = hp * 52
                odd = 1 - hp
                dpos = [base + 3 + 6 * d for d in range(8)]
                if cfg.get("stamps") and per == 0: it.append((base, "s_memrealtime s[100:101]"))
                if cfg.get("stamps") and per == 1: it.append((base, [f"s_mov_b32 m0, {sIt}", f"v_writelane_b32 v45, s100, m0"]))
                if cfg.get("stamps") and per == 3 and last: it.append((base, f"v_accvgpr_write_b32 a225, v45"))
                dring = (ring + LEAD) & 3
                dodd = dring & 1
                if not last or per + LEAD <= 2:
                    gB = dmaB(dring * 32768 + 16384, dodd)
                    gA = dmaA(dring * 32768, sAlo if dodd else sAhi)
                    for gi, g in enumerate((gB, gA)):
                        if last and gi == 1: continue
                        it.append((dpos[gi * 4] - 1, g[0]))
                        for q in range(4): it.append((dpos[gi * 4 + q], g[1 + q]))
                        it.append((dpos[gi * 4 + 3] + 1, g[5]))
                if not last and PF == 4:
                    pp = base + cfg.get("pfpos", 48)
                    it.append((pp - 1, f"s_cmp_eq_u32 {sCe}, {per}"))
                    it.append((pp, [f"s_cbranch_scc0 {lab}_nt{per}", touch, tadv, f"{lab}_nt{per}:"]))
                    if per == 0:
                        it.append((base + 1, [f"s_bitcmp1_b32 {sPn}, {sIt}", f"s_cselect_b32 {sCe}, {sCls}, 7"]))
                GP = 0
                if last and per == 0 and PF == 4:
                    p0 = base + 46
                    if W2 == 2:
                        it.append((p0, [f"s_cmp_eq_u32 {sW}, 3", f"s_cbranch_scc0 {lab}_lt", touch, tadv, touch, f"{lab}_lt:"]))
                    if W2 == 3:
                        it.append((p0, [f"s_cmp_eq_u32 {sI}, 1", f"s_cbranch_scc0 {lab}_lt", touch, f"{lab}_lt:"]))
                    it.append((p0 + 1, ["s_mov_b32 s88, s96", "s_mov_b32 s89, s97"]))
                    it.append((p0 + 2, [f"s_mov_b32 s90, {1024*2048}", f"s_lshr_b32 {sP}, s4, 1"]))
                    it.append((p0 + 3, f"v_lshlrev_b32 v{vP}, 7, v{vL}"))
                    it.append((p0 + 4, ["s_mov_b64 exec, 0xffff", touch, "s_mov_b64 exec, -1"]))
                if last and per == GP:
                    ex = ["s_mov_b32 s56, s94", "s_mov_b32 s57, s95", "s_mov_b32 s58, 2048", "s_mov_b32 s59, 0x20000",
                          f"v_and_b32 v{T+5}, 31, v{vL}", f"v_lshlrev_b32 v{T+5}, 4, v{T+5}", f"v_lshrrev_b32 v{T+6}, 5, v{vL}",
                          f"v_lshl_add_u32 v{T+6}, v{T+6}, 11, v{T+5}", "s_lshl_b32 s4, s2, 2", f"s_add_u32 s4, s4, {sW}", "s_lshl_b32 s4, s4, 12"]
                    for i, x in enumerate(ex): it.append((base + i, x))
                    for u in range(4):
                        it.append((base + 23 + 3 * u, f"buffer_load_dwordx4 {ar(GX+u*4)}, v{T+6}, {SA}, s4 offen offset:{u*512}"))
                        it.append((base + 35 + 3 * u, f"buffer_load_dwordx4 {ar(GX+16+u*4)}, v{T+5}, s[56:59], 0 offen offset:{u*512}"))
                rb = rdB(ring, odd); ra = rdA(ring, 1 - st, 0 if odd else 1)
                if last and per == 3: rb, ra = [], []
                if last and per == 2: ra = []
                rd = rb[:4]
                rest_b = rb[4:]
                k = 0
                for i in range(len(ra)):
                    rd.append(ra[i])
                    n = (len(rest_b) * (i + 1)) // len(ra)
                    rd += rest_b[k:n]; k = n
                rd += rest_b[k:]
                if rd:
                    pos = spread(len(rd), base, base + 44, avoid=dpos)
                    for p, x in zip(pos, rd): it.append((p, x))
                if hp == 0:
                    issued = sum(1 for p in pos if p <= 39)
                    it.append((39, f"s_waitcnt lgkmcnt({min(15, issued - 4)})"))
                if not last:
                    w = [f"s_waitcnt vmcnt({8*(LEAD-1)}) lgkmcnt(0)", "s_barrier"]
                else:
                    n0 = (8 if LEAD == 3 else 4) + 8 + XT
                    n1 = 8 + XT
                    w = [[f"s_waitcnt vmcnt({n0}) lgkmcnt(0)", "s_barrier"], [f"s_waitcnt vmcnt({n1}) lgkmcnt(0)", "s_barrier"],
                         ["s_waitcnt lgkmcnt(0)"], []][per]
                if per == 3 and not last:
                    it.append((base + 43, f"s_add_u32 {sIt}, {sIt}, 1"))
                    it.append((base + 50, f"s_cmp_lt_u32 {sIt}, 7"))
                    w.append(f"s_cbranch_scc1 {lab}")
                it.append((base + 51, w))
            for x in place(mf, it): e(x)

    def loop(typ):
        lab = "L1_loopH" if typ else "L1_loopQ"
        e(".p2align 3")
        e(f"{lab}:")
        body(typ, False, lab)
        body(typ, True, lab)

    def blockbase(m, dst, kbs, extra):
        e(f"""
        s_xor_b32 {dst}, s60, {m}
        s_add_u32 {dst}, {dst}, s61
        s_mul_i32 {dst}, {dst}, {kbs*1024}
        s_add_u32 {dst}, {dst}, {extra}
        """)

    tmpi = [0]
    def tq():
        r = T + 4 * (tmpi[0] % 4); tmpi[0] += 1
        return r

    def relu_store(a0, a1, soff, imm):
        r = tq()
        e(f"""
        v_cvt_pk_bf16_f32 v{r}, v{a0}, v{a0+1}
        v_cvt_pk_bf16_f32 v{r+1}, v{a0+2}, v{a0+3}
        v_cvt_pk_bf16_f32 v{r+2}, v{a1}, v{a1+1}
        v_cvt_pk_bf16_f32 v{r+3}, v{a1+2}, v{a1+3}
        v_pk_max_i16 v{r}, v{r}, 0
        v_pk_max_i16 v{r+1}, v{r+1}, 0
        v_pk_max_i16 v{r+2}, v{r+2}, 0
        v_pk_max_i16 v{r+3}, v{r+3}, 0
        buffer_store_dwordx4 {vr(r)}, v{vL16}, {SW}, {soff} offen offset:{imm} {ST}
        """)

    def epi_common():
        stamp(e, 2, cfg)
        e(f"""
        s_lshl_b32 s60, {sQD}, 1
        s_lshl_b32 s61, {sMT}, 4
        s_lshl_b32 s4, {sI}, 3
        s_add_u32 s61, s61, s4
        s_lshl_b32 s62, s50, 1
        s_add_u32 s62, s62, {sJ}
        s_lshl_b32 s62, s62, 10
        s_lshl_b32 s63, s51, 1
        s_add_u32 s63, s63, {sJ}
        s_lshl_b32 s63, s63, 10
        """)
        for m in range(2):
            blockbase(m, "s4", A2_KB, "s62")
            relu_store(acc(3, 0, m), acc(3, 1, m), "s4", 0)

    def phi4(a, P):
        e(f"""
        v_pk_mul_f32 {vr(P,2)}, {vr(a,2)}, s[64:65]
        v_pk_mul_f32 {vr(P+2,2)}, {vr(a+2,2)}, s[64:65]
        v_exp_f32_e64 v{P}, v{P} clamp
        v_max_f32 v{a}, s66, v{a}
        v_exp_f32_e64 v{P+1}, v{P+1} clamp
        v_max_f32 v{a+1}, s66, v{a+1}
        v_exp_f32_e64 v{P+2}, v{P+2} clamp
        v_max_f32 v{a+2}, s66, v{a+2}
        v_exp_f32_e64 v{P+3}, v{P+3} clamp
        v_max_f32 v{a+3}, s66, v{a+3}
        v_pk_add_f32 {vr(a,2)}, {vr(a,2)}, {vr(P,2)}
        v_pk_add_f32 {vr(a+2,2)}, {vr(a+2,2)}, {vr(P+2,2)}
        """)

    def pack8(dst, a0, a1):
        e(f"""
        v_cvt_pk_bf16_f32 v{dst}, v{a0}, v{a0+1}
        v_cvt_pk_bf16_f32 v{dst+1}, v{a0+2}, v{a0+3}
        v_cvt_pk_bf16_f32 v{dst+2}, v{a1}, v{a1+1}
        v_cvt_pk_bf16_f32 v{dst+3}, v{a1+2}, v{a1+3}
        """)

    loop(0)
    epi_common()
    e(f"""
    s_mov_b32 s64, {LOG2E}
    s_mov_b32 s65, {LOG2E}
    s_mov_b32 s66, {EPS}
    s_lshl_b32 s67, {sIDX}, 1
    s_add_u32 s67, s67, {sJ}
    s_lshl_b32 s5, s67, 10
    s_add_u32 s5, s5, {WS_PQ}
    """)
    P = T + 16
    for m in range(8):
        phi4(acc(0, 0, m), P); phi4(acc(0, 1, m), P + 4)
        blockbase(m, "s4", 32, "s5")
        r = tq()
        pack8(r, acc(0, 0, m), acc(0, 1, m))
        e(f"buffer_store_dwordx4 {vr(r)}, v{vL16}, {SW}, s4 offen {ST}")
    KV = acc(0, 0, 0)
    Z = KV + 16; ONES = KV + 24
    for i in range(4): e(f"v_mov_b32 v{ONES+i}, 0x3f803f80")
    for u in range(4):
        for t in range(2):
            phi4(acc(1, t, 2 * u), P); phi4(acc(1, t, 2 * u + 1), P + 4)
            pack8(acc(1, t, 2 * u), acc(1, t, 2 * u), acc(1, t, 2 * u + 1))
        for t in range(2):
            pack8(acc(2, t, 2 * u), acc(2, t, 2 * u), acc(2, t, 2 * u + 1))
        e("s_nop 1")
        for td in range(2):
            for te in range(2):
                d = vr(KV + (td * 2 + te) * 4)
                e(mfma(d, vr(acc(1, td, 2 * u)), vr(acc(2, te, 2 * u)), None if u else "0"))
            d = vr(Z + td * 4)
            e(mfma(d, vr(acc(1, td, 2 * u)), vr(ONES), None if u else "0"))
    e(f"""
    s_mul_i32 s4, {sJ}, 6144
    s_add_u32 s4, s4, {SPARE}
    v_add_u32 v{T}, s4, v{vL16}
    s_nop 7
    s_cmp_eq_u32 {sI}, 0
    s_cbranch_scc1 L1_q_rd
    """)
    for i in range(6): e(f"ds_write_b128 v{T}, {vr(KV+i*4)} offset:{i*1024}")
    e(f"""
    s_waitcnt vmcnt({10 + XT}) lgkmcnt(0)
    s_barrier
    s_branch L1_gate
    L1_q_rd:
    s_barrier
    """)
    R = KV + 32
    for i in range(6): e(f"ds_read_b128 {vr(R+i*4)}, v{T} offset:{i*1024}")
    e(f"""
    s_lshl_b32 s4, s67, 3
    s_add_u32 s4, s4, {sMT}
    s_lshl_b32 s4, s4, 12
    s_add_u32 s4, s4, {WS_KVP}
    s_lshl_b32 s5, s67, 10
    s_lshl_b32 s6, {sMT}, 6
    s_add_u32 s5, s5, s6
    s_add_u32 s5, s5, {WS_ZP}
    v_and_b32 v{T+1}, 48, v{vL}
    s_waitcnt lgkmcnt(0)
    """)
    for i in range(12): e(f"v_pk_add_f32 {vr(KV+i*2,2)}, {vr(KV+i*2,2)}, {vr(R+i*2,2)}")
    for i in range(4): e(f"buffer_store_dwordx4 {vr(KV+i*4)}, v{vL16}, {SW}, s4 offen offset:{i*1024} {ST}")
    e(f"""
    s_mov_b64 s[6:7], exec
    s_mov_b32 exec_lo, 0x00010001
    s_mov_b32 exec_hi, 0x00010001
    buffer_store_dwordx4 {vr(Z)}, v{T+1}, {SW}, s5 offen {ST}
    buffer_store_dwordx4 {vr(Z+4)}, v{T+1}, {SW}, s5 offen offset:512 {ST}
    s_mov_b64 exec, s[6:7]
    s_waitcnt vmcnt({16 + XT})
    s_branch L1_gate
    """)
    loop(1)
    epi_common()
    for m in range(8):
        blockbase(m, "s4", A2_KB, "s63")
        relu_store(acc(0, 0, m), acc(0, 1, m), "s4", 0)
        relu_store(acc(1, 0, m), acc(1, 1, m), "s4", 2048)
        e("s_add_u32 s5, s4, 4096")
        relu_store(acc(2, 0, m), acc(2, 1, m), "s5", 0)
    G0 = ACC + 64
    e(f"s_waitcnt vmcnt({26 + XT})")
    e("L1_gate:")
    stamp(e, 3, cfg)
    for i in range(32): e(f"v_accvgpr_read_b32 v{G0+i}, a{GX+i}")
    e(f"v_mov_b32 v{G0+32}, 0")
    e(f"v_mov_b32 v{G0+33}, 0")
    for i in range(16): e(f"v_dot2c_f32_bf16 v{G0+32+(i&1)}, v{G0+i}, v{G0+16+i}")
    g = G0 + 32
    e(f"""
    s_nop 2
    v_add_f32 v{g}, v{g}, v{g+1}
    s_nop 1
    v_add_f32_dpp v{g}, v{g}, v{g} quad_perm:[1,0,3,2] row_mask:0xf bank_mask:0xf
    s_nop 1
    v_add_f32_dpp v{g}, v{g}, v{g} quad_perm:[2,3,0,1] row_mask:0xf bank_mask:0xf
    s_nop 1
    v_add_f32_dpp v{g}, v{g}, v{g} row_half_mirror row_mask:0xf bank_mask:0xf
    s_nop 1
    v_add_f32_dpp v{g}, v{g}, v{g} row_mirror row_mask:0xf bank_mask:0xf
    s_nop 1
    v_add_f32_dpp v{g}, v{g}, v{g} row_bcast:15 row_mask:0xa bank_mask:0xf
    v_mul_f32 v{g}, 0xbfb8aa3b, v{g}
    v_exp_f32 v{g}, v{g}
    v_lshrrev_b32 v{g+1}, 5, v{vL}
    v_add_f32 v{g}, 1.0, v{g}
    v_rcp_f32 v{g}, v{g}
    v_lshlrev_b32 v{g+1}, 2, v{g+1}
    s_lshl_b32 s4, s2, 2
    s_add_u32 s4, s4, {sW}
    s_lshl_b32 s5, s4, 3
    s_add_u32 s5, s5, {WS_G}
    s_mov_b32 exec_lo, 0x80000000
    s_mov_b32 exec_hi, 0x80000000
    buffer_store_dword v{g}, v{g+1}, {SW}, s5 offen {ST}
    s_mov_b64 exec, 1
    v_mov_b32 v{g+2}, 0
    s_lshl_b32 s5, s2, 7
    s_lshl_b32 s6, {sW}, 2
    s_add_u32 s5, s5, s6
    s_add_u32 s6, s5, {WS_FLAG}
    s_add_u32 s5, s5, {WS_CNT}
    buffer_store_dword v{g+2}, v{g+2}, {SW}, s6 offen {ST}
    buffer_store_dword v{g+2}, v{g+2}, {SW}, s5 offen {ST}
    s_mov_b64 exec, -1
    """)
    if cfg.get("stamps"):
        stamp(e, 4, cfg)
        e("s_waitcnt vmcnt(0)")
        stamp(e, 5, cfg)
        stamp_flush(e, cfg, 8, 0, SW, "L1_st")
        e(f"""
        v_lshlrev_b32 v1, 2, v0
        v_cmp_gt_u32 vcc, 8, v0
        s_and_saveexec_b64 s[68:69], vcc
        s_cbranch_execz L1_st2
        buffer_store_dword a225, v1, {SW}, s3 offen offset:32
        L1_st2:
        """)
    e("L1_end:")
    e("s_endpgm")
    return K, e.text(), dict(vgpr=512, accum=256, sgpr=102)


class VQ:
    def __init__(self, init=()):
        self.q = list(init)
    def op(self, tag): self.q.append(tag)
    def need(self, *tags):
        last = max((i for i, t in enumerate(self.q) if t in tags), default=-1)
        n = len(self.q) - 1 - last
        self.q = self.q[last + 1:]
        assert n <= 63
        return n


def gen_k2(cfg):
    e = Em()
    K = "gm2_kernel"
    SW, SB, SO, SB2 = "s[8:11]", "s[12:15]", "s[16:19]", "s[20:23]"
    sW, sRB, sNB, sKH, sI, sJ = "s24", "s25", "s26", "s27", "s28", "s29"
    sA, sB, sLds, sLds2, sIt, sPart = "s30", "s31", "s32", "s33", "s34", "s35"
    sA2, sB2 = "s36", "s37"
    vL, vL16, vA2 = 1, 2, 3
    vB = 4
    rA, rB = 8, 10
    vFl, vOne, vZero = 14, 15, 16
    vG = 20
    T = 24
    ACC = 48
    def acc(L, t, m): return ACC + ((L * 2 + t) * 4 + m) * 4
    def afr(buf, m, ks): return buf * 32 + (m * 2 + ks) * 4
    def bfr(buf, L, t, ks): return 64 + buf * 32 + ((L * 2 + t) * 2 + ks) * 4
    SPARE = 131072

    e(f"""
    s_cmp_ge_u32 s2, 256
    s_cbranch_scc1 L2_end
    """)
    stamp(e, 0, cfg)
    e(f"""
    s_load_dwordx2 s[40:41], s[0:1], 16
    s_load_dwordx2 s[42:43], s[0:1], 40
    s_load_dwordx2 s[44:45], s[0:1], 56
    s_load_dwordx2 s[46:47], s[0:1], 72
    v_lshrrev_b32 v{T}, 6, v0
    v_and_b32 v{vL}, 63, v0
    v_readfirstlane_b32 {sW}, v{T}
    v_lshlrev_b32 v{vL16}, 4, v{vL}
    s_and_b32 s3, s2, 7
    s_lshr_b32 s4, s2, 3
    """)
    e(f"""
    s_and_b32 {sKH}, s3, 1
    s_lshr_b32 s5, s3, 1
    s_and_b32 s5, s5, 1
    s_lshl_b32 s5, s5, 3
    s_and_b32 s6, s4, 7
    s_add_u32 {sRB}, s5, s6
    s_lshr_b32 s5, s3, 2
    s_lshl_b32 s5, s5, 2
    s_lshr_b32 s6, s4, 3
    s_add_u32 {sNB}, s5, s6
    s_xor_b32 {sPart}, s2, 1
    s_lshr_b32 {sI}, {sW}, 1
    s_and_b32 {sJ}, {sW}, 1
    s_lshl_b32 {sLds}, {sW}, 12
    s_lshl_b32 {sLds2}, {sW}, 11
    v_add_u32 v{vA2}, {A2_KB*1024 - 2048}, v{vL16}
    """)
    e(f"""
    s_lshl_b32 s4, {sRB}, 3
    s_lshl_b32 s5, {sW}, 1
    s_add_u32 s4, s4, s5
    s_mul_i32 s4, s4, {A2_KB*1024}
    s_add_u32 {sA2}, s4, {112*1024}
    s_mul_i32 s5, {sKH}, {56*1024}
    s_add_u32 {sA}, s4, s5
    """)
    e(f"""
    s_mul_i32 s4, {sKH}, 1792
    s_lshl_b32 s5, {sJ}, 5
    s_add_u32 s4, s4, s5
    s_lshl_b32 s4, s4, 11
    s_xor_b32 s5, {sKH}, {sI}
    s_lshl_b32 s6, {sNB}, 1
    s_add_u32 s5, s5, s6
    s_lshl_b32 s5, s5, 7
    s_add_u32 {sB}, s4, s5
    s_add_u32 s50, s6, {sKH}
    s_lshl_b32 s50, s50, 7
    s_lshl_b32 s4, {sW}, 15
    s_add_u32 {sB2}, s4, s50
    """)
    e(f"""
    v_lshrrev_b32 v{T}, 3, v{vL}
    v_lshrrev_b32 v{T+1}, 4, v{vL}
    v_and_b32 v{T+2}, 7, v{vL}
    v_lshlrev_b32 v{T+3}, 1, v{T+1}
    v_xor_b32 v{T+3}, v{T+3}, v{T+2}
    v_lshlrev_b32 v{T+3}, 4, v{T+3}
    v_lshl_add_u32 v{vB}, v{T}, 11, v{T+3}
    v_add_u32 v{vB+1}, {16384-1024}, v{vB}
    v_add_u32 v{vB+2}, {2*(16384-1024)}, v{vB}
    v_add_u32 v{vB+3}, {3*(16384-1024)}, v{vB}
    s_waitcnt lgkmcnt(0)
    s_mov_b32 s8, s46
    s_mov_b32 s9, s47
    s_mov_b32 s10, {WS_SIZE}
    s_mov_b32 s11, 0x20000
    s_mov_b32 s12, s42
    s_mov_b32 s13, s43
    s_mov_b32 s14, {3584*2048}
    s_mov_b32 s15, 0x20000
    s_mov_b32 s16, s44
    s_mov_b32 s17, s45
    s_mov_b32 s18, {2048*2048}
    s_mov_b32 s19, 0x20000
    s_mov_b32 s20, s40
    s_mov_b32 s21, s41
    s_mov_b32 s22, {1024*2048}
    s_mov_b32 s23, 0x20000
    """)
    stamp(e, 1, cfg, 2)
    vq = VQ()
    KP = 176
    ZPv = 208; PQv = 216
    e(f"""
    s_and_b32 s51, s2, 7
    s_lshr_b32 s52, s2, 3
    s_lshl_b32 s4, s52, 15
    s_lshl_b32 s5, {sW}, 10
    s_add_u32 s4, s4, s5
    s_add_u32 s4, s4, {WS_KVP}
    """)
    for p in range(8):
        e(f"buffer_load_dwordx4 {vr(KP+p*4)}, v{vL16}, {SW}, s4 offen")
        vq.op("o")
        if p < 7: e("s_add_u32 s4, s4, 4096")
    e(f"""
    v_lshlrev_b32 v{T+4}, 6, v{T+2}
    v_lshl_add_u32 v{T+4}, v{T+1}, 4, v{T+4}
    s_lshl_b32 s4, s52, 10
    s_add_u32 s4, s4, {WS_ZP}
    buffer_load_dwordx4 {vr(ZPv)}, v{T+4}, {SW}, s4 offen
    buffer_load_dwordx4 {vr(ZPv+4)}, v{T+4}, {SW}, s4 offen offset:512
    s_lshl_b32 s53, s51, 4
    s_lshl_b32 s5, {sW}, 2
    s_add_u32 s53, s53, s5
    s_lshl_b32 s4, s53, 5
    s_add_u32 s4, s4, s52
    s_lshl_b32 s4, s4, 10
    s_add_u32 s4, s4, {WS_PQ}
    """)
    vq.op("o"); vq.op("o")
    for m in range(4):
        e(f"buffer_load_dwordx4 {vr(PQv+m*4)}, v{vL16}, {SW}, s4 offen")
        vq.op("o")
        if m < 3: e("s_add_u32 s4, s4, 32768")

    stamp(e, 2, cfg, 2)
    def dmaA(ring, ph):
        s = sA if ph == 1 else sA2
        fl = "" if ph == 1 else "sc1 "
        r = [f"s_add_u32 m0, {sLds}, {ring*32768}"]
        r += [f"buffer_load_dwordx4 v{vL16 if q < 2 else vA2}, {SW}, {s} offen offset:{q*1024} {fl}lds" for q in range(4)]
        r += [f"s_add_u32 {s}, {s}, 2048"]
        return r

    def dmaB(ring, ph):
        if ph == 1:
            r = [f"s_add_u32 m0, {sLds}, {ring*32768 + 16384}"]
            r += [f"buffer_load_dwordx4 v{vB+q}, {SB}, {sB} offen offset:{q*1024} {cfg.get('pb2','')} lds" for q in range(4)]
            r += [f"s_add_u32 {sB}, {sB}, {64*2048}"]
        else:
            r = [f"s_add_u32 m0, {sLds2}, {ring*32768 + 16384}"]
            r += [f"buffer_load_dwordx4 v{vB+q}, {SB2}, {sB2} offen offset:{q*1024} {cfg.get('pb2','')} lds" for q in range(2)]
            r += [f"s_add_u32 {sB2}, {sB2}, {64*2048}"]
        return r

    for t in range(4):
        for g in (dmaB(t, 1), dmaA(t, 1)):
            e(g[0]); e("s_nop 0")
            for x in g[1:]:
                e(x)
                if x.startswith("buffer"): vq.op(("s", t))
    stamp(e, 3, cfg, 2)
    e(f"""
    v_and_b32 v{T+5}, 15, v{vL}
    v_lshlrev_b32 v{T+6}, 2, v{T+5}
    s_lshl_b32 s4, {sRB}, 9
    s_lshl_b32 s5, {sI}, 8
    s_add_u32 s4, s4, s5
    s_add_u32 s4, s4, {WS_G}
    """)
    for m in range(4):
        e(f"buffer_load_dword v{vG+m}, v{T+6}, {SW}, s4 offen offset:{m*64}")
        vq.op("g")
    e(f"""
    s_lshl_b32 s4, {sI}, 13
    v_add_u32 v{rA}, s4, v{vL16}
    v_add_u32 v{rA+1}, 0x10000, v{rA}
    v_lshrrev_b32 v{T+3}, 2, v{vL}
    v_lshlrev_b32 v{T+3}, 7, v{T+3}
    v_bfe_u32 v{T+4}, v{vL}, 3, 2
    s_lshl_b32 s4, {sJ}, 1
    v_xor_b32 v{T+4}, s4, v{T+4}
    v_lshl_add_u32 v{T+3}, v{T+4}, 5, v{T+3}
    v_and_b32 v{T+4}, 3, v{vL}
    v_lshl_add_u32 v{T+3}, v{T+4}, 3, v{T+3}
    v_add_u32 v{rB}, 16384, v{T+3}
    v_xor_b32 v{rB+1}, 32, v{rB}
    v_add_u32 v{rB+2}, 0x10000, v{rB}
    v_add_u32 v{rB+3}, 0x10000, v{rB+1}
    v_mov_b32 v{vOne}, 1
    v_mov_b32 v{vZero}, 0
    """)
    for i in range(96): e(f"v_mov_b32 v{ACC+i}, 0")
    stamp(e, 4, cfg, 2)
    e(f"s_waitcnt vmcnt({vq.need('o')})")
    stamp(e, 1, cfg); stamp(e, 5, cfg, 2)
    for stp in (4, 2, 1):
        for p in range(stp):
            for h in range(2):
                a = KP + p * 4 + h * 2
                e(f"v_pk_add_f32 {vr(a,2)}, {vr(a,2)}, {vr(a+stp*4,2)}")
    e(f"""
    v_cvt_pk_bf16_f32 v{KP}, v{KP}, v{KP+1}
    v_cvt_pk_bf16_f32 v{KP+1}, v{KP+2}, v{KP+3}
    s_lshl_b32 s4, {sJ}, 10
    s_lshl_b32 s5, {sI}, 3
    s_add_u32 s4, s4, s5
    s_add_u32 s4, s4, {SPARE}
    v_add_u32 v{T}, s4, v{vL16}
    v_add_u32 v{T+1}, {SPARE}, v{vL16}
    ds_write_b64 v{T}, {vr(KP,2)}
    """)
    for dpp in ("quad_perm:[1,0,3,2]", "quad_perm:[2,3,0,1]", "row_half_mirror"):
        for i in range(8):
            e(f"v_add_f32_dpp v{ZPv+i}, v{ZPv+i}, v{ZPv+i} {dpp} row_mask:0xf bank_mask:0xf")
    for i in range(4):
        e(f"v_cvt_pk_bf16_f32 v{ZPv+i}, v{ZPv+2*i}, v{ZPv+2*i+1}")
    e(f"""
    s_waitcnt vmcnt({vq.need(('s',0))}) lgkmcnt(0)
    s_barrier
    ds_read_b128 {vr(KP+4)}, v{T+1}
    ds_read_b128 {vr(KP+8)}, v{T+1} offset:1024
    """)

    def rdA(ring, buf):
        return [f"ds_read_b128 {ar(afr(buf, m, ks))}, v{rA+(ring>>1)} offset:{(ring&1)*32768 + m*2048 + ks*1024}"
                for m in range(4) for ks in range(2)]

    def rdB(ring, buf, ph):
        return [f"ds_read_b64_tr_b16 {ar(bfr(buf, L, t, ks)+hf*2, 2)}, v{rB+t+2*(ring>>1)} offset:{(ring&1)*32768 + L*8192 + ks*4096 + hf*2048}"
                for L in range(2 if ph == 1 else 1) for t in range(2) for ks in range(2) for hf in range(2)]

    rd0 = rdA(0, 0) + rdB(0, 0, 1)
    for x in rd0[:12]: e(x)
    e("s_waitcnt lgkmcnt(12)")
    O = 144
    DEN = KP + 12
    for m in range(4):
        e(mfma(vr(DEN + m * 4), vr(ZPv), vr(PQv + m * 4), "0"))
        e(mfma(vr(O + m * 8), vr(KP + 4), vr(PQv + m * 4), "0"))
        e(mfma(vr(O + m * 8 + 4), vr(KP + 8), vr(PQv + m * 4), "0"))
    for x in rd0[12:]: e(x)
    e(f"""
    s_mul_i32 s4, s53, {A2_KB*1024}
    s_add_u32 s5, s52, 112
    s_lshl_b32 s5, s5, 10
    s_add_u32 s4, s4, s5
    """)
    for m in range(4):
        e(f"v_add_f32 v{DEN+m*4}, {EPS:#x}, v{DEN+m*4}")
    for m in range(4):
        e(f"v_rcp_f32 v{DEN+m*4}, v{DEN+m*4}")
    for m in range(4):
        for h in range(4):
            a = O + m * 8 + h * 2
            e(f"v_pk_mul_f32 {vr(a,2)}, {vr(a,2)}, {vr(DEN+m*4,2)} op_sel_hi:[1,0]")
        for h in range(4):
            e(f"v_cvt_pk_bf16_f32 v{PQv+m*4+h}, v{O+m*8+h*2}, v{O+m*8+h*2+1}")
        e(f"buffer_store_dwordx4 {vr(PQv+m*4)}, v{vL16}, {SW}, s4 offen sc1")
        vq.op("ost")
        if m < 3: e(f"s_add_u32 s4, s4, {A2_KB*1024}")
    e(f"""
    s_mov_b32 {sIt}, 0
    s_lshl_b32 s54, s51, 7
    s_add_u32 s54, s54, {WS_CNT}
    s_lshr_b32 s55, {sRB}, 1
    s_lshl_b32 s55, s55, 7
    s_add_u32 s55, s55, {WS_CNT}
    s_lshl_b32 s4, {sW}, 2
    s_lshl_b32 s56, s2, 7
    s_add_u32 s56, s56, s4
    s_add_u32 s56, s56, {WS_FLAG}
    s_lshl_b32 s57, {sPart}, 7
    s_add_u32 s57, s57, s4
    s_add_u32 s57, s57, {WS_FLAG}
    s_lshl_b32 s4, {sW}, 13
    s_lshl_b32 s58, s2, 15
    s_add_u32 s58, s58, s4
    s_add_u32 s58, s58, {WS_XCH}
    s_lshl_b32 s59, {sPart}, 15
    s_add_u32 s59, s59, s4
    s_add_u32 s59, s59, {WS_XCH}
    s_waitcnt vmcnt({vq.need(('s',1))}) lgkmcnt(0)
    s_barrier
    """)
    stamp(e, 2, cfg); stamp(e, 6, cfg, 2); stamp(e, 7, cfg, 2)

    def step(s, vq, extra=(), tail=(), fixedN=None):
        ph = 1 if s < 28 else 2
        buf = s & 1
        mf = []
        for L in range(2 if ph == 1 else 1):
            for t in range(2):
                for m in range(4):
                    for ks in range(2):
                        mf.append(mfma(vr(acc(L if ph == 1 else 2, t, m)), ar(bfr(buf, L, t, ks)), ar(afr(buf, m, ks))))
        N = len(mf)
        it = []
        vm = []
        dpos = []
        if s + 4 < 44:
            dph = 1 if s + 4 < 28 else 2
            gB, gA = dmaB(s & 3, dph), dmaA(s & 3, dph)
            nd = len(gB) + len(gA) - 4
            dpos = [1 + (d * (N - 1)) // nd for d in range(nd)]
            k = 0
            for g in (gB, gA):
                it.append((dpos[k] - 1, g[0]))
                for x in g[1:-1]:
                    it.append((dpos[k], x)); k += 1
                it.append((min(N - 1, dpos[k - 1] + 1), g[-1]))
        if s + 1 < 44:
            rph = 1 if s + 1 < 28 else 2
            ra, rb = rdA((s + 1) & 3, 1 - buf), rdB((s + 1) & 3, 1 - buf, rph)
            rd = []
            k = 0
            for i in range(len(ra)):
                n = (len(rb) * (i + 1)) // len(ra)
                rd += rb[k:n]; k = n
                rd.append(ra[i])
            hi = N - 4 if ph == 1 else N - 2
            free = [p for p in range(0, hi) if p not in dpos]
            for i, x in enumerate(rd): it.append((free[(i * len(free)) // len(rd)], x))
        it += list(extra)
        body = place(mf, it)
        for x in body:
            tag = None
            if isinstance(x, tuple): x, tag = x
            e(x)
            if x.startswith("buffer"):
                vq.op(tag if tag else ("s", s + 4))
        if s + 1 < 44:
            if s + 2 < 44:
                n = vq.need(("s", s + 2))
                if fixedN is not None:
                    assert n >= fixedN, (s, n)
                    n = fixedN
                e(f"s_waitcnt vmcnt({n}) lgkmcnt(0)")
                e("s_barrier")
            else:
                e("s_waitcnt lgkmcnt(0)")
        for x in tail: e(x)

    e(".p2align 3")
    e("L2_loop:")
    for s in range(4):
        tail = []
        ex = []
        if s == 3:
            tail = [f"s_add_u32 s4, {sIt}, {sW}", "s_cmp_eq_u32 s4, 0", "s_cbranch_scc0 L2_nosig",
                    "s_mov_b64 exec, 1", f"buffer_atomic_add v{vOne}, off, {SW}, s54", "s_mov_b64 exec, -1", "L2_nosig:",
                    f"s_add_u32 {sIt}, {sIt}, 1", f"s_cmp_lt_u32 {sIt}, 6", "s_cbranch_scc1 L2_loop"]
        if s == 0:
            ex = [(0, (f"buffer_load_dword v{vFl}, off, {SW}, s55 sc1", "cnt"))]
        step(s, vq, ex, tail, fixedN=16)
    assert "ost" not in vq.q and "cnt" not in vq.q
    vq = VQ([("s", 26)] * 8 + [("s", 27)] * 8)
    stamp(e, 3, cfg)
    e(f"""
    v_readfirstlane_b32 s4, v{vFl}
    s_nop 0
    s_cmp_ge_u32 s4, 32
    s_cbranch_scc1 L2_oready
    s_mov_b32 s5, 0
    L2_ospin:
    s_add_u32 s5, s5, 1
    s_cmp_gt_u32 s5, 0x40000
    s_cbranch_scc1 L2_oready
    s_sleep 2
    buffer_load_dword v{vFl}, off, {SW}, s55 sc1
    s_waitcnt vmcnt(0)
    v_readfirstlane_b32 s4, v{vFl}
    s_nop 0
    s_cmp_ge_u32 s4, 32
    s_cbranch_scc0 L2_ospin
    L2_oready:
    """)
    FS, FP, FC = cfg.get("fs", 31), cfg.get("fp", 35), cfg.get("fc", 38)
    for s in range(24, 44):
        ex = []; tail = []
        if s in (28, 29):
            t = s - 28
            for m in range(4):
                ex.append((8 + 2 * m if s == 28 else 2 + 3 * m,
                           (f"buffer_store_dwordx4 {vr(acc(1, t, m))}, v{vL16}, {SW}, s58 offen offset:{m*1024} sc1", "xst")))
            if s == 28: tail = ["s_add_u32 s58, s58, 4096"]
        if s == 28: stamp(e, 4, cfg)
        if s == FS + 1:
            assert "xst" not in vq.q
            ex += [(0, ["s_mov_b64 exec, 1", (f"buffer_store_dword v{vOne}, off, {SW}, s56 sc1", "fl"), "s_mov_b64 exec, -1", "s_nop 3"])]
        if s == FP:
            ex += [(0, (f"buffer_load_dword v{vFl}, off, {SW}, s57 sc1", "pf"))]
        if s == FC:
            assert "pf" not in vq.q
            e(f"""
            v_readfirstlane_b32 s4, v{vFl}
            s_nop 0
            s_cmp_eq_u32 s4, 1
            s_cbranch_scc1 L2_pready
            s_mov_b32 s5, 0
            L2_pspin:
            s_add_u32 s5, s5, 1
            s_cmp_gt_u32 s5, 0x40000
            s_cbranch_scc1 L2_pready
            s_sleep 1
            buffer_load_dword v{vFl}, off, {SW}, s57 sc1
            s_waitcnt vmcnt(0)
            v_readfirstlane_b32 s4, v{vFl}
            s_nop 0
            s_cmp_eq_u32 s4, 1
            s_cbranch_scc0 L2_pspin
            L2_pready:
            """)
        if s in (FC, FC + 1):
            t = s - FC
            for m in range(4):
                ex.append((2 + 3 * m, (f"buffer_load_dwordx4 {vr(acc(3, t, m))}, v{vL16}, {SW}, s59 offen offset:{m*1024} sc1", "rx")))
            if s == FC: tail = ["s_add_u32 s59, s59, 4096"]
        step(s, vq, ex, tail)
    stamp(e, 5, cfg)
    e(f"""
    v_and_b32 v{T}, 15, v{vL}
    v_bfe_u32 v{T+1}, v{vL}, 4, 1
    v_lshrrev_b32 v{T+2}, 5, v{vL}
    v_lshlrev_b32 v{T}, 11, v{T}
    v_lshl_add_u32 v{T}, v{T+1}, 5, v{T}
    v_lshl_add_u32 v{T}, v{T+2}, 4, v{T}
    s_lshl_b32 s4, {sRB}, 18
    s_lshl_b32 s5, {sI}, 17
    s_add_u32 s4, s4, s5
    s_lshl_b32 s5, {sJ}, 6
    s_add_u32 s4, s4, s5
    s_add_u32 s4, s4, s50
    s_waitcnt vmcnt(0)
    """)
    for m in range(4):
        gg = T + 4; og = T + 6
        e(f"v_mov_b32 v{gg}, v{vG+m}")
        e(f"v_sub_f32 v{og}, 1.0, v{vG+m}")
        for t in range(2):
            for h in range(2):
                b = acc(0, t, m) + 2 * h; r = acc(3, t, m) + 2 * h; a = acc(2, t, m) + 2 * h
                e(f"v_pk_add_f32 {vr(b,2)}, {vr(b,2)}, {vr(r,2)}")
                e(f"v_pk_mul_f32 {vr(b,2)}, {vr(b,2)}, {vr(og,2)} op_sel_hi:[1,0]")
                e(f"v_pk_fma_f32 {vr(b,2)}, {vr(a,2)}, {vr(gg,2)}, {vr(b,2)} op_sel_hi:[1,0,1]")
        r = T + 8 + 4 * m
        for t in range(2):
            for h in range(2):
                e(f"v_cvt_pk_bf16_f32 v{r+2*t+h}, v{acc(0,t,m)+2*h}, v{acc(0,t,m)+2*h+1}")
        e(f"""
        s_nop 1
        v_permlane16_swap_b32 v{r}, v{r+2}
        v_permlane16_swap_b32 v{r+1}, v{r+3}
        buffer_store_dwordx4 {vr(r)}, v{T}, {SO}, s4 offen
        """)
        if m < 3: e(f"s_add_u32 s4, s4, {16*2048}")
    if cfg.get("stamps"):
        stamp(e, 6, cfg)
        e("s_waitcnt vmcnt(0)")
        stamp(e, 7, cfg)
        stamp_flush(e, cfg, 8, 1, SW, "L2_st")
    e("L2_end:")
    e("s_endpgm")
    return K, e.text(), dict(vgpr=384, accum=256, sgpr=96)


def gen_k3(cfg):
    kA, iA, kB, iB, own = [int(c) for c in cfg["probe"]]
    e = Em()
    e(f"""
    s_cmp_ge_u32 s2, 1
    s_cbranch_scc1 L3_end
    s_load_dwordx2 s[4:5], s[0:1], 72
    v_lshlrev_b32 v1, 6, v0
    v_mov_b32 v2, 0
    s_waitcnt lgkmcnt(0)
    s_mov_b32 s8, s4
    s_mov_b32 s9, s5
    s_mov_b32 s10, {WS_SIZE}
    s_mov_b32 s11, 0x20000
    s_mov_b32 s12, {WS_STAMP + kA*16384 + iA*4}
    s_mov_b32 s13, {WS_STAMP + kB*16384 + iB*4}
    buffer_load_dword v3, v{1 if own else 2}, s[8:11], s12 offen
    buffer_load_dword v4, v1, s[8:11], s13 offen
    s_waitcnt vmcnt(0)
    v_sub_u32 v3, v4, v3
    v_min_u32 v3, 20000, v3
    s_memrealtime s[14:15]
    s_waitcnt lgkmcnt(0)
    L3_spin:
    s_memrealtime s[16:17]
    s_waitcnt lgkmcnt(0)
    s_sub_u32 s16, s16, s14
    v_cmp_lt_u32 vcc, s16, v3
    s_nop 4
    s_cbranch_vccnz L3_spin
    L3_end:
    s_endpgm
    """)
    return "gm3_kernel", e.text(), dict(vgpr=8, accum=8, sgpr=32)


HEAD = """; Kernarg layout for this problem (80 bytes, ptrs only, base s[0:1]):
"""


def build(cfg=None):
    cfg = cfg or {}
    ks = [gen_k1(cfg), gen_k2(cfg)]
    s = HEAD
    order = cfg.get("order", "12")
    if "0" in order:
        ks.append(("gm0_kernel", "  s_endpgm\n", dict(vgpr=8, accum=8, sgpr=16)))
    if "3" in order:
        ks.append(gen_k3(cfg))
    for c in order:
        s += f"; @launch kernel=gm{c}_kernel grid=(256,1,1) block=(256,1,1) lds={163840 if c in '12' else 0}\n"
    s += '.amdgcn_target "amdgcn-amd-amdhsa--gfx950"\n.text\n'
    for k, body, d in ks:
        s += f".globl {k}\n.p2align 8\n.type {k},@function\n{k}:\n" + body
    s += '.section .rodata,"a"\n'
    for k, body, d in ks:
        s += f""".p2align 6
.amdhsa_kernel {k}
  .amdhsa_next_free_vgpr {d['vgpr']}
  .amdhsa_next_free_sgpr {d['sgpr']}
  .amdhsa_accum_offset {d['accum']}
  .amdhsa_group_segment_fixed_size 0
  .amdhsa_kernarg_size 80
  .amdhsa_user_sgpr_count 2
  .amdhsa_user_sgpr_kernarg_segment_ptr 1
  .amdhsa_system_sgpr_workgroup_id_x 1
  .amdhsa_float_denorm_mode_32 3
.end_amdhsa_kernel
"""
    return s


if __name__ == "__main__":
    out = sys.argv[1] if len(sys.argv) > 1 else f"cdna_kernels/{NAME}.s"
    cfg = {}
    for a in sys.argv[2:]:
        k, v = a.split("=")
        cfg[k] = int(v) if (v.lstrip("-").isdigit() and k not in ("order", "probe")) else v
    open(out, "w").write(build(cfg))
    print("wrote", out)
```

```python
import re, sys

def regs(tok):
    tok = tok.strip()
    m = re.fullmatch(r"-?([vas])\[(\d+):(\d+)\]", tok)
    if m: return {(m.group(1), i) for i in range(int(m.group(2)), int(m.group(3)) + 1)}
    m = re.fullmatch(r"-?([vas])(\d+)", tok)
    if m: return {(m.group(1), int(m.group(2)))}
    if tok in ("vcc", "m0", "exec"): return {("x", tok)}
    if tok in ("exec_lo", "exec_hi"): return {("x", "exec")}
    return set()

TRANS = ("v_exp_f32", "v_rcp_f32", "v_log_f32", "v_rsq_f32", "v_sqrt_f32")
class I:
    def __init__(s, txt, ln):
        s.t, s.ln = txt, ln
        p = txt.split(None, 1); s.op = p[0]
        ops = [x.strip() for x in re.split(r",\s*(?![^\[]*\])", p[1])] if len(p) > 1 else []
        if ops: ops[-1] = ops[-1].split()[0] if not ops[-1].startswith(("hwreg",)) else ops[-1]
        s.ops = ops
        s.mfma = s.op.startswith("v_mfma"); s.valu = s.op.startswith("v_") and not s.mfma
        s.vmem = s.op.startswith("buffer_"); s.ds = s.op.startswith("ds_"); s.salu = s.op.startswith("s_")
        s.w, s.r = set(), set()
        R = [regs(o) for o in ops]
        if s.mfma:
            s.w = R[0]; s.A = R[1] | R[2]; s.C = R[3]; s.r = s.A | s.C
        elif s.valu:
            s.w = R[0]; s.r = set().union(*R[1:]) if len(R) > 1 else set()
            if s.op.startswith(("v_fmac", "v_dot2c", "v_writelane")) or "dpp" in s.op: s.r |= R[0]
            if s.op.startswith("v_permlane"): s.w = R[0] | R[1]; s.r = R[0] | R[1]
        elif s.vmem:
            if "lds" in txt.split(): s.r = set().union(*R) | {("x", "m0")}
            elif "load" in s.op: s.w = R[0]; s.r = set().union(*R[1:])
            else: s.r = set().union(*R); s.data = R[0]
        elif s.ds:
            if "read" in s.op: s.w = R[0]; s.r = set().union(*R[1:])
            else: s.r = set().union(*R)
        elif s.salu and R and not s.op.startswith(("s_cmp", "s_bitcmp", "s_waitcnt", "s_cbranch", "s_branch", "s_nop", "s_sleep")):
            s.w = R[0]; s.r = set().union(*R[1:]) if len(R) > 1 else set()
        s.states = int(ops[0]) + 1 if s.op == "s_nop" else 1

def need(a, b):
    n = 0
    if a.valu:
        vw = {x for x in a.w if x[0] in "va"}; sw = a.w - vw
        if b.mfma and vw & b.r: n = max(n, 2)
        if b.valu and "dpp" in b.op and vw & b.r: n = max(n, 2)
        if b.op.startswith("v_permlane") and vw & b.r: n = max(n, 2)
        if b.op.startswith(("v_readfirstlane", "v_readlane")) and vw & b.r: n = max(n, 1)
        if a.op.startswith(TRANS) and b.valu and not b.op.startswith(TRANS) and vw & b.r: n = max(n, 1)
        if a.op.startswith("v_dot2") and b.valu and b.op != a.op and vw & (b.r | b.w): n = max(n, 3)
        if sw & b.r and b.valu: n = max(n, 2)
        if sw & b.r and b.vmem: n = max(n, 5)
        if sw & b.r and b.salu and ('x', 'vcc') not in sw: n = max(n, 1)
        if ("x", "vcc") in sw and b.op.startswith("s_cbranch_vcc"): n = max(n, 5)
    if a.mfma:
        if b.mfma:
            if a.w & b.A: n = max(n, 8)
            if a.w & b.C and a.w != b.C: n = max(n, 6)
            if a.w & b.w and not (a.w & b.C): n = max(n, 6)
        elif a.w & (b.r | b.w): n = max(n, 8)
        if b.valu and a.C & b.w: n = max(n, 3)
    if a.vmem and hasattr(a, "data") and len(a.data) >= 3 and a.data & b.w:
        n = max(n, 2 if b.valu else 1)
    if a.salu and ("x", "m0") in a.w and (b.vmem and ("x", "m0") in b.r): n = max(n, 1)
    return n

def check(text):
    ins, lab = [], {}
    for ln, l in enumerate(text.split("\n"), 1):
        l = l.split(";")[0].strip()
        if not l or l.startswith("."): continue
        if l.endswith(":"): lab[l[:-1]] = len(ins); continue
        ins.append(I(l, ln))
    def succ(i):
        x = ins[i]
        if x.op == "s_endpgm": return []
        if x.op == "s_branch": return [lab[x.ops[0]]]
        r = [i + 1] if i + 1 < len(ins) else []
        if x.op.startswith("s_cbranch"): r.append(lab[x.ops[0]])
        return r
    bad = 0
    for i, a in enumerate(ins):
        if not (a.valu or a.mfma or a.vmem or (a.salu and ("x", "m0") in a.w)): continue
        st = [(j, 0) for j in succ(i)]; seen = set()
        while st:
            j, d = st.pop()
            if d >= 8 or (j, d) in seen or j >= len(ins): continue
            seen.add((j, d))
            n = need(a, ins[j])
            if n > d:
                bad += 1; print(f"HAZARD need {n} have {d}: L{a.ln} '{a.t}' -> L{ins[j].ln} '{ins[j].t}'")
            for k in succ(j): st.append((k, d + ins[j].states))
    return bad

if __name__ == "__main__":
    n = check(open(sys.argv[1]).read())
    print("hazards:", n)
```

```python
import sys

NAME = "gated_mix__linear_attn_block__dense_activation_relu__prompt"

A2_KB = 144
WS_A2 = 0
WS_PQ = 0x1200000
WS_KVP = 0x1600000
WS_ZP = 0x1700000
WS_G = 0x1710000
WS_FLAG = 0x1720000
WS_CNT = 0x1730000
WS_STAMP = 0x1740000
WS_XCH = 0x1800000
WS_SIZE = 0x2800000

LOG2E = 0x3fb8aa3b
EPS = 0x358637bd


class Em:
    def __init__(self):
        self.l = []

    def __call__(self, s):
        for x in s.strip("\n").split("\n"):
            x = x.strip()
            if x:
                self.l.append(x if x.endswith(":") else "  " + x)

    def text(self):
        return "\n".join(self.l) + "\n"


def place(mf, items):
    by = {}
    for p, ins in items:
        by.setdefault(p, []).extend(ins if isinstance(ins, list) else [ins])
    out = list(by.get(-1, []))
    for i, x in enumerate(mf):
        out.append(x)
        out += by.get(i, [])
    assert all(-1 <= p < len(mf) for p in by), (sorted(by), len(mf))
    return out


def vr(b, n=4, c="v"):
    return f"{c}[{b}:{b+n-1}]" if n > 1 else f"{c}{b}"


def ar(b, n=4):
    return vr(b, n, "a")


def mfma(d, a, b, c=None):
    return f"v_mfma_f32_16x16x32_bf16 {d}, {a}, {b}, {d if c is None else c}"


def spread(n, lo, hi, avoid=()):
    free = [p for p in range(lo, hi) if p not in avoid]
    return [free[(i * len(free)) // n] for i in range(n)]


def stamp(e, idx, cfg, mode=1):
    if cfg.get("stamps") and (cfg.get("smode", 1) == mode or idx == 0):
        e(f"s_memrealtime s[{70+2*idx}:{71+2*idx}]")


def stamp_flush(e, cfg, nst, kidx, srd, lab):
    if not cfg.get("stamps"):
        return
    e("s_waitcnt lgkmcnt(0)")
    for i in range(nst):
        e(f"v_mov_b32 v{2+i}, s{70+2*i}")
    e(f"""
    s_lshl_b32 s3, s2, 6
    s_add_u32 s3, s3, {WS_STAMP + kidx*16384}
    v_mov_b32 v1, 0
    v_cmp_eq_u32 vcc, 0, v0
    s_and_saveexec_b64 s[68:69], vcc
    s_cbranch_execz {lab}
    buffer_store_dwordx4 v[2:5], v1, {srd}, s3 offen
    buffer_store_dwordx4 v[6:9], v1, {srd}, s3 offen offset:16
    {lab}:
    s_mov_b64 exec, s[68:69]
    """)


def gen_k1(cfg):
    e = Em()
    K = "gm1_kernel"
    ST = cfg.get("st1", "sc1")
    SA, SB0, SB1, SW = "s[8:11]", "s[12:15]", "s[16:19]", "s[20:23]"
    sW, sMT, sTYPE, sIDX, sSH, sQD = "s24", "s25", "s26", "s27", "s28", "s29"
    sAlo, sAhi, sB0, sB1, sB0st, sB1st, sLds, sIt = "s30", "s31", "s32", "s33", "s34", "s35", "s36", "s37"
    sI, sJ = "s38", "s39"
    vL, vL16 = 1, 2
    vA, vB0, vB1 = 4, 8, 12
    rA, rB = 16, 20
    T = 24
    ACC = 48
    def acc(L, t, m):
        if L == 3:
            return ACC + 192 + (t * 2 + m) * 4
        return ACC + ((L * 2 + t) * 8 + m) * 4
    def afr(buf, m, ks): return buf * 64 + (m * 2 + ks) * 4
    def bfr(L, t, ks): return 128 + ((L * 2 + t) * 2 + ks) * 4
    GX = 192

    SPARE = 131072
    PF = cfg.get("pf", 4)
    LEAD = cfg.get("lead", 3)
    W2 = cfg.get("w2mode", 2)
    W2M = {1: (0x60, 0x60), 2: (0x60, 0), 3: (0x40, 0x40)}[W2]
    XT = 1 if PF == 4 else 0
    sCe = "s87"
    SP, sP, sPst, vP, vD = "s[88:91]", "s92", "s93", 3, 224
    sCls, sPn = "s99", "s98"
    def lines(txt): return [x.strip() for x in txt.strip().split("\n") if x.strip()]

    def dmaA(ldsoff, sreg):
        r = [f"s_add_u32 m0, {sLds}, {ldsoff}"]
        r += [f"buffer_load_dwordx4 v{vA+q}, {SA}, {sreg} offen offset:{q*1024} {cfg.get('pa1','')} lds" for q in range(4)]
        r += [f"s_add_u32 {sreg}, {sreg}, 128"]
        return r

    def dmaB(ldsoff, odd):
        srd, vb, sreg, sst = (SB1, vB1, sB1, sB1st) if odd else (SB0, vB0, sB0, sB0st)
        r = [f"s_add_u32 m0, {sLds}, {ldsoff}"]
        r += [f"buffer_load_dwordx4 v{vb+q}, {srd}, {sreg} offen offset:{q*1024} {cfg.get('pb1','')} lds" for q in range(4)]
        r += [f"s_add_u32 {sreg}, {sreg}, {sst}"]
        return r

    def burst(g):
        e(g[0]); e("s_nop 0")
        for x in g[1:]: e(x)

    def mix(main, fill):
        for i in range(len(main)):
            e(main[i])
            for x in fill[(i * len(fill)) // len(main):((i + 1) * len(fill)) // len(main)]: e(x)

    touch = f"buffer_load_dword a{vD}, v{vP}, {SP}, {sP} offen"
    tadv = f"s_add_u32 {sP}, {sP}, {sPst}"

    T0 = cfg.get("t0", 2)
    def pfsetup():
        e(f"""
        s_bfe_u32 {sCls}, s2, 0x20003
        s_mov_b32 s91, 0x20000
        v_lshlrev_b32 v{vP}, 7, v{vL}
        v_mov_b32 v{T+6}, 0x40000000
        s_cmp_eq_u32 {sI}, 0
        s_cbranch_scc1 L1_pfa
        s_lshl_b32 s5, {sJ}, 1
        s_xor_b32 {sCls}, {sCls}, s5
        s_mov_b32 s88, s46
        s_mov_b32 s89, s47
        s_mov_b32 s90, {3584*2048}
        s_mov_b32 {sPst}, 7168
        s_lshl_b32 s5, s2, 1
        s_add_u32 s5, s5, {sJ}
        s_mul_i32 {sP}, s5, {2*7168}
        s_cmp_eq_u32 {sJ}, 0
        s_mov_b32 {sPn}, {W2M[1]}
        s_cmov_b32 {sPn}, {W2M[0]}
        v_cmp_le_u32 vcc, {sPst}, v{vP}
        s_branch L1_pfd
        L1_pfa:
        s_mov_b32 {sPn}, 31
        s_cmp_eq_u32 {sJ}, 0
        s_cbranch_scc0 L1_pfx
        s_bitcmp0_b32 s2, 0
        s_cselect_b32 s88, s42, s44
        s_cselect_b32 s89, s43, s45
        s_mov_b32 s5, 7168
        s_cmov_b32 s5, 6144
        s_lshl_b32 s90, s5, 10
        s_lshl_b32 {sPst}, s5, 7
        s_lshr_b32 s6, s2, 1
        s_mul_i32 {sP}, s6, s5
        {'' if T0 else tadv}
        v_cmp_le_u32 vcc, s5, v{vP}
        s_branch L1_pfd
        L1_pfx:
        s_mov_b32 s88, s40
        s_mov_b32 s89, s41
        s_mov_b32 s90, {2048*2048}
        s_mov_b32 {sPst}, 256
        s_lshl_b32 {sP}, s2, 14
        s_add_u32 {sP}, {sP}, {128 if T0 else 384}
        v_lshrrev_b32 v{vP}, 1, v{vL}
        v_lshlrev_b32 v{vP}, 11, v{vP}
        v_and_b32 v{T+5}, 1, v{vL}
        v_cmp_lt_u32 vcc, 15, v{vL}
        v_lshl_add_u32 v{vP}, v{T+5}, 7, v{vP}
        L1_pfd:
        s_nop 1
        v_cndmask_b32 v{vP}, v{vP}, v{T+6}, vcc
        """)
    def tpro(n):
        e(f"""
        s_cmp_eq_u32 {sI}, 0
        s_cbranch_scc0 L1_tp{n}
        {touch}
        {tadv}
        L1_tp{n}:
        """)
    e(f"""
    s_cmp_ge_u32 s2, 256
    s_cbranch_scc1 L1_end
    """)
    stamp(e, 0, cfg)
    e(f"""
    s_load_dwordx4 s[40:43], s[0:1], 0
    s_load_dwordx4 s[44:47], s[0:1], 32
    s_load_dwordx2 s[48:49], s[0:1], 72
    s_load_dwordx2 s[94:95], s[0:1], 48
    s_load_dwordx2 s[96:97], s[0:1], 16
    v_lshrrev_b32 v3, 6, v0
    v_and_b32 v{vL}, 63, v0
    v_readfirstlane_b32 {sW}, v3
    v_lshrrev_b32 v{T}, 3, v{vL}
    v_lshrrev_b32 v{T+1}, 4, v{vL}
    v_and_b32 v{T+2}, 7, v{vL}
    v_xor_b32 v{T+3}, v{T+2}, v{T+1}
    v_lshlrev_b32 v{T+4}, 11, v{T}
    v_lshl_add_u32 v{vA}, v{T+3}, 4, v{T+4}
    v_xor_b32 v{vA+1}, 64, v{vA}
    v_add_u32 v{vA+2}, {2*16384 - 2048}, v{vA}
    v_add_u32 v{vA+1}, {16384 - 1024}, v{vA+1}
    v_add_u32 v{vA+3}, {2*16384 - 2048}, v{vA+1}
    s_and_b32 s5, s2, 1
    s_lshl_b32 s5, s5, 2
    s_bfe_u32 s6, s2, 0x20003
    s_add_u32 {sMT}, s5, s6
    s_bfe_u32 {sQD}, s2, 0x20005
    s_lshr_b32 {sI}, {sW}, 1
    s_and_b32 {sJ}, {sW}, 1
    s_lshl_b32 {sLds}, {sW}, 12
    s_xor_b32 s4, {sJ}, {sQD}
    s_lshl_b32 s4, s4, 5
    s_lshl_b32 s5, {sMT}, 8
    s_lshl_b32 s6, {sI}, 7
    s_add_u32 s5, s5, s6
    s_add_u32 s6, s5, s4
    s_lshl_b32 {sAlo}, s6, 11
    s_xor_b32 {sAhi}, {sAlo}, {64 << 11}
    s_mov_b32 s10, {2048*2048}
    s_mov_b32 s11, 0x20000
    s_waitcnt lgkmcnt(0)
    s_mov_b32 s8, s40
    s_mov_b32 s9, s41
    """)
    stamp(e, 1, cfg, 2)
    if PF == 4 and T0 == 1:
        pfsetup(); tpro(0)
    burst(dmaA(SPARE, sAlo))
    if PF == 4 and T0 == 2:
        pfsetup(); tpro(0)
    burst(dmaA(0, sAhi))
    e(f"""
    s_bfe_u32 s3, s2, 0x20001
    s_bfe_u32 {sTYPE}, s2, 0x10005
    s_lshr_b32 s5, s2, 6
    s_lshl_b32 s6, s3, 2
    s_add_u32 {sIDX}, s5, s6
    s_lshr_b32 {sSH}, {sIDX}, 1
    s_mul_i32 s50, {sSH}, 7
    s_and_b32 s51, {sIDX}, 1
    s_mul_i32 s51, s51, 3
    s_add_u32 s51, s51, s50
    s_add_u32 s50, s50, 6
    v_and_b32 v{T+3}, 1, v{T+1}
    v_lshlrev_b32 v{T+3}, 1, v{T+3}
    v_xor_b32 v{T+3}, v{T+3}, v{T+2}
    v_lshlrev_b32 v{T+3}, 4, v{T+3}
    v_xor_b32 v{T+4}, 64, v{T+3}
    s_cmp_eq_u32 {sTYPE}, 0
    s_cselect_b32 s52, {sIDX}, s51
    s_cselect_b32 s53, 16, 1
    s_cselect_b32 s16, s42, s44
    s_cselect_b32 s17, s43, s45
    s_mov_b32 s54, 7168
    s_cmov_b32 s54, 6144
    s_cmp_eq_u32 {sI}, 0
    s_cselect_b32 s4, s50, s52
    s_cselect_b32 s55, 7168, s54
    s_cselect_b32 s12, s44, s16
    s_cselect_b32 s13, s45, s17
    s_lshl_b32 s14, s55, 10
    s_mov_b32 s15, 0x20000
    s_lshl_b32 s7, {sJ}, 5
    s_lshl_b32 s4, s4, 7
    s_mul_i32 s6, s7, s55
    s_add_u32 {sB0}, s4, s6
    s_lshl_b32 {sB0st}, s55, 6
    """)
    def bvoff(vb, sp):
        e(f"""
        s_lshl_b32 s4, {sp}, 3
        s_sub_u32 s4, s4, 1024
        s_lshl_b32 s5, s4, 1
        v_mul_lo_u32 v{T+5}, v{T}, {sp}
        v_add_u32 v{vb}, v{T+5}, v{T+3}
        v_add3_u32 v{vb+1}, v{T+5}, v{T+4}, s4
        v_add_u32 v{vb+2}, s5, v{vb}
        v_add_u32 v{vb+3}, s5, v{vb+1}
        """)
    bvoff(vB0, "s55")
    burst(dmaB(16384, 0))
    e(f"""
    s_add_u32 s4, {sI}, 1
    s_mul_i32 s4, s4, s53
    s_add_u32 s4, s4, s52
    s_lshl_b32 s4, s4, 7
    s_mul_i32 s6, s7, s54
    s_add_u32 {sB1}, s4, s6
    s_lshl_b32 {sB1st}, s54, 6
    s_lshl_b32 s18, s54, 10
    s_mov_b32 s19, 0x20000
    """)
    bvoff(vB1, "s54")
    e(f"""
    v_lshlrev_b32 v{vL16}, 4, v{vL}
    v_and_b32 v{T}, 15, v{vL}
    v_lshrrev_b32 v{T+3}, 1, v{T}
    v_xor_b32 v{T+3}, v{T+3}, v{T+1}
    v_lshlrev_b32 v{T+3}, 4, v{T+3}
    v_lshl_add_u32 v{T+3}, v{T}, 7, v{T+3}
    s_lshl_b32 s4, {sI}, 13
    v_add_u32 v{rA}, s4, v{T+3}
    v_xor_b32 v{rA+1}, 64, v{rA}
    v_add_u32 v{rA+2}, 0x10000, v{rA}
    v_add_u32 v{rA+3}, 0x10000, v{rA+1}
    v_bfe_u32 v{T}, v{vL}, 2, 2
    v_lshl_add_u32 v{T+3}, v{T+1}, 3, v{T}
    v_lshlrev_b32 v{T+3}, 7, v{T+3}
    v_bfe_u32 v{T+4}, v{vL}, 3, 2
    s_lshl_b32 s4, {sJ}, 1
    v_xor_b32 v{T+4}, s4, v{T+4}
    v_lshl_add_u32 v{T+3}, v{T+4}, 5, v{T+3}
    v_and_b32 v{T+4}, 3, v{vL}
    v_lshl_add_u32 v{T+3}, v{T+4}, 3, v{T+3}
    v_add_u32 v{rB}, 16384, v{T+3}
    v_xor_b32 v{rB+1}, 32, v{rB}
    v_add_u32 v{rB+2}, 0x10000, v{rB}
    v_add_u32 v{rB+3}, 0x10000, v{rB+1}
    s_mov_b32 s20, s48
    s_mov_b32 s21, s49
    s_mov_b32 s22, {WS_SIZE}
    s_mov_b32 s23, 0x20000
    """)
    if PF == 4 and not T0: pfsetup()
    CPF = cfg.get("cpf", 1)
    SC = "s[4:7]"
    def codetouch(first, nlines, lab):
        return ["s_mov_b32 s4, s62", "s_mov_b32 s5, s63",
                f"s_mov_b32 s6, gm_text_end-{first}", "s_mov_b32 s7, 0x20000", "s_lshr_b32 s3, s2, 3", f"s_mul_i32 s3, s3, {nlines*128}",
                f"v_lshlrev_b32 v{T+7}, 7, v{vL}", [f"s_mov_b64 exec, {(1 << nlines) - 1}", f"buffer_load_dword a{vD}, v{T+7}, {SC}, s3 offen", "s_mov_b64 exec, -1"]]
    if CPF:
        e("s_getpc_b64 s[62:63]\nL1_cpa:\ns_add_u32 s62, s62, L1_loopQ-L1_cpa\ns_addc_u32 s63, s63, 0")
        e(f"s_cmp_eq_u32 {sW}, 3")
        e("s_cbranch_scc0 L1_cp0")
        for x in codetouch("L1_loopQ", 5, "L1_cpa"):
            for y in (x if isinstance(x, list) else [x]): e(y)
        e("L1_cp0:")
    stamp(e, 2, cfg, 2)
    mix(dmaB(32768 + 16384, 1) + dmaA(32768, sAlo), [f"v_mov_b32 v{ACC+i}, 0" for i in range(208)])
    if PF == 4: tpro(1)

    def rdA(ring, buf, half):
        r = []
        for mm in range(4):
            for ks in range(2):
                r.append(f"ds_read_b128 {ar(afr(buf, half*4+mm, ks))}, v{rA+ks+2*(ring>>1)} offset:{(ring&1)*32768 + mm*2048}")
        return r

    def rdB(ring, odd):
        r = []
        for li, L in enumerate((1, 2) if odd else (3, 0)):
            for t in range(2):
                for ks in range(2):
                    for hf in range(2):
                        r.append(f"ds_read_b64_tr_b16 {ar(bfr(L, t, ks)+hf*2, 2)}, v{rB+t+2*(ring>>1)} offset:{(ring&1)*32768 + li*8192 + ks*4096 + hf*512}")
        return r

    stamp(e, 3, cfg, 2)
    e(f"""
    v_add_u32 v{T}, 0x20000, v{rA}
    v_add_u32 v{T+1}, 0x20000, v{rA+1}
    s_waitcnt vmcnt(8)
    s_barrier
    """)
    stamp(e, 1, cfg); stamp(e, 4, cfg, 2)
    rd = rdB(0, 0) + [f"ds_read_b128 {ar(afr(0, mm, ks))}, v{T+ks} offset:{mm*2048}" for mm in range(4) for ks in range(2)] + rdA(0, 0, 1)
    for x in rd[:12]: e(x)
    mix(dmaB(2 * 32768 + 16384, 0) + dmaA(2 * 32768, sAhi), rd[12:])
    if LEAD == 3:
        burst(dmaB(3 * 32768 + 16384, 1))
        burst(dmaA(3 * 32768, sAlo))
    stamp(e, 5, cfg, 2)
    e(f"""
    s_mov_b32 {sIt}, 0
    """)
    if PF == 4:
        e(f"""
        s_cmp_eq_u32 {sI}, 0
        s_cbranch_scc0 L1_tp2
        {touch}
        {tadv}
        s_waitcnt vmcnt({8*(LEAD-1) + 2})
        s_branch L1_tp3
        L1_tp2:
        """)
    e(f"""
    s_waitcnt vmcnt({8*(LEAD-1)})
    L1_tp3:
    s_waitcnt lgkmcnt(0)
    s_barrier
    """)
    stamp(e, 6, cfg); stamp(e, 6, cfg, 2)
    e(f"""
    s_cmp_eq_u32 {sTYPE}, 0
    s_cbranch_scc0 L1_loopH
    """)

    def body(typ, last, lab):
        for st in range(2):
            mf = []
            for L, nm in ((3, 2), (0, 8), (1, 8), (2, 8)):
                for t in range(2):
                    for m in range(nm):
                        for ks in range(2):
                            d = vr(acc(L, t, m)); w = ar(bfr(L, t, ks)); x = ar(afr(st, m, ks))
                            mf.append(mfma(d, x, w) if (typ == 0 and L in (1, 2)) else mfma(d, w, x))
            it = []
            for hp in range(2):
                per = 2 * st + hp
                ring = (per + 1) & 3
                base = hp * 52
                odd = 1 - hp
                dpos = [base + 3 + 6 * d for d in range(8)]
                if cfg.get("stamps") and per == 0: it.append((base, "s_memrealtime s[100:101]"))
                if cfg.get("stamps") and per == 1: it.append((base, [f"s_mov_b32 m0, {sIt}", f"v_writelane_b32 v45, s100, m0"]))
                if cfg.get("stamps") and per == 3 and last: it.append((base, f"v_accvgpr_write_b32 a225, v45"))
                dring = (ring + LEAD) & 3
                dodd = dring & 1
                if not last or per + LEAD <= 2:
                    gB = dmaB(dring * 32768 + 16384, dodd)
                    gA = dmaA(dring * 32768, sAlo if dodd else sAhi)
                    for gi, g in enumerate((gB, gA)):
                        if last and gi == 1: continue
                        it.append((dpos[gi * 4] - 1, g[0]))
                        for q in range(4): it.append((dpos[gi * 4 + q], g[1 + q]))
                        it.append((dpos[gi * 4 + 3] + 1, g[5]))
                if not last and PF == 4:
                    pp = base + cfg.get("pfpos", 48)
                    it.append((pp - 1, f"s_cmp_eq_u32 {sCe}, {per}"))
                    it.append((pp, [f"s_cbranch_scc0 {lab}_nt{per}", touch, tadv, f"{lab}_nt{per}:"]))
                    if per == 0:
                        it.append((base + 1, [f"s_bitcmp1_b32 {sPn}, {sIt}", f"s_cselect_b32 {sCe}, {sCls}, 7"]))
                GP = 0
                if last and per == 0 and PF == 4:
                    p0 = base + 46
                    if W2 == 2:
                        it.append((p0, [f"s_cmp_eq_u32 {sW}, 3", f"s_cbranch_scc0 {lab}_lt", touch, tadv, touch, f"{lab}_lt:"]))
                    if W2 == 3:
                        it.append((p0, [f"s_cmp_eq_u32 {sI}, 1", f"s_cbranch_scc0 {lab}_lt", touch, f"{lab}_lt:"]))
                    it.append((p0 + 1, ["s_mov_b32 s88, s96", "s_mov_b32 s89, s97"]))
                    it.append((p0 + 2, [f"s_mov_b32 s90, {1024*2048}", f"s_lshr_b32 {sP}, s4, 1"]))
                    it.append((p0 + 3, f"v_lshlrev_b32 v{vP}, 7, v{vL}"))
                    it.append((p0 + 4, ["s_mov_b64 exec, 0xffff", touch, "s_mov_b64 exec, -1"]))
                if last and per == 1 and CPF:
                    blk = [f"s_cmp_eq_u32 {sW}, 3", f"s_cbranch_scc0 {lab}_cp1"]
                    for x in codetouch("L1_loopQ", 12, f"{lab}_cpb"): blk += x if isinstance(x, list) else [x]
                    it.append((base + 46, blk + [f"{lab}_cp1:"]))
                if last and per == GP:
                    ex = ["s_mov_b32 s56, s94", "s_mov_b32 s57, s95", "s_mov_b32 s58, 2048", "s_mov_b32 s59, 0x20000",
                          f"v_and_b32 v{T+5}, 31, v{vL}", f"v_lshlrev_b32 v{T+5}, 4, v{T+5}", f"v_lshrrev_b32 v{T+6}, 5, v{vL}",
                          f"v_lshl_add_u32 v{T+6}, v{T+6}, 11, v{T+5}", "s_lshl_b32 s4, s2, 2", f"s_add_u32 s4, s4, {sW}", "s_lshl_b32 s4, s4, 12"]
                    for i, x in enumerate(ex): it.append((base + i, x))
                    for u in range(4):
                        it.append((base + 23 + 3 * u, f"buffer_load_dwordx4 {ar(GX+u*4)}, v{T+6}, {SA}, s4 offen offset:{u*512}"))
                        it.append((base + 35 + 3 * u, f"buffer_load_dwordx4 {ar(GX+16+u*4)}, v{T+5}, s[56:59], 0 offen offset:{u*512}"))
                rb = rdB(ring, odd); ra = rdA(ring, 1 - st, 0 if odd else 1)
                if last and per == 3: rb, ra = [], []
                if last and per == 2: ra = []
                rd = rb[:4]
                rest_b = rb[4:]
                k = 0
                for i in range(len(ra)):
                    rd.append(ra[i])
                    n = (len(rest_b) * (i + 1)) // len(ra)
                    rd += rest_b[k:n]; k = n
                rd += rest_b[k:]
                if rd:
                    pos = spread(len(rd), base, base + 44, avoid=dpos)
                    for p, x in zip(pos, rd): it.append((p, x))
                if hp == 0:
                    issued = sum(1 for p in pos if p <= 39)
                    it.append((39, f"s_waitcnt lgkmcnt({min(15, issued - 4)})"))
                if not last:
                    w = [f"s_waitcnt vmcnt({8*(LEAD-1)}) lgkmcnt(0)", "s_barrier"]
                else:
                    n0 = (8 if LEAD == 3 else 4) + 8 + XT
                    n1 = 8 + XT
                    w = [[f"s_waitcnt vmcnt({n0}) lgkmcnt(0)", "s_barrier"], [f"s_waitcnt vmcnt({n1}) lgkmcnt(0)", "s_barrier"],
                         ["s_waitcnt lgkmcnt(0)"], []][per]
                if per == 3 and not last:
                    it.append((base + 43, f"s_add_u32 {sIt}, {sIt}, 1"))
                    it.append((base + 50, f"s_cmp_lt_u32 {sIt}, 7"))
                    w.append(f"s_cbranch_scc1 {lab}")
                it.append((base + 51, w))
            for x in place(mf, it): e(x)

    def loop(typ):
        lab = "L1_loopH" if typ else "L1_loopQ"
        e(".p2align 3")
        e(f"{lab}:")
        body(typ, False, lab)
        body(typ, True, lab)

    def blockbase(m, dst, kbs, extra):
        e(f"""
        s_xor_b32 {dst}, s60, {m}
        s_add_u32 {dst}, {dst}, s61
        s_mul_i32 {dst}, {dst}, {kbs*1024}
        s_add_u32 {dst}, {dst}, {extra}
        """)

    tmpi = [0]
    def tq():
        r = T + 4 * (tmpi[0] % 4); tmpi[0] += 1
        return r

    def relu_store(a0, a1, soff, imm):
        r = tq()
        e(f"""
        v_cvt_pk_bf16_f32 v{r}, v{a0}, v{a0+1}
        v_cvt_pk_bf16_f32 v{r+1}, v{a0+2}, v{a0+3}
        v_cvt_pk_bf16_f32 v{r+2}, v{a1}, v{a1+1}
        v_cvt_pk_bf16_f32 v{r+3}, v{a1+2}, v{a1+3}
        v_pk_max_i16 v{r}, v{r}, 0
        v_pk_max_i16 v{r+1}, v{r+1}, 0
        v_pk_max_i16 v{r+2}, v{r+2}, 0
        v_pk_max_i16 v{r+3}, v{r+3}, 0
        buffer_store_dwordx4 {vr(r)}, v{vL16}, {SW}, {soff} offen offset:{imm} {ST}
        """)

    def epi_common():
        stamp(e, 2, cfg)
        e(f"""
        s_lshl_b32 s60, {sQD}, 1
        s_lshl_b32 s61, {sMT}, 4
        s_lshl_b32 s4, {sI}, 3
        s_add_u32 s61, s61, s4
        s_lshl_b32 s62, s50, 1
        s_add_u32 s62, s62, {sJ}
        s_lshl_b32 s62, s62, 10
        s_lshl_b32 s63, s51, 1
        s_add_u32 s63, s63, {sJ}
        s_lshl_b32 s63, s63, 10
        """)
        for m in range(2):
            blockbase(m, "s4", A2_KB, "s62")
            relu_store(acc(3, 0, m), acc(3, 1, m), "s4", 0)

    def phi4(a, P):
        e(f"""
        v_pk_mul_f32 {vr(P,2)}, {vr(a,2)}, s[64:65]
        v_pk_mul_f32 {vr(P+2,2)}, {vr(a+2,2)}, s[64:65]
        v_exp_f32_e64 v{P}, v{P} clamp
        v_max_f32 v{a}, s66, v{a}
        v_exp_f32_e64 v{P+1}, v{P+1} clamp
        v_max_f32 v{a+1}, s66, v{a+1}
        v_exp_f32_e64 v{P+2}, v{P+2} clamp
        v_max_f32 v{a+2}, s66, v{a+2}
        v_exp_f32_e64 v{P+3}, v{P+3} clamp
        v_max_f32 v{a+3}, s66, v{a+3}
        v_pk_add_f32 {vr(a,2)}, {vr(a,2)}, {vr(P,2)}
        v_pk_add_f32 {vr(a+2,2)}, {vr(a+2,2)}, {vr(P+2,2)}
        """)

    def pack8(dst, a0, a1):
        e(f"""
        v_cvt_pk_bf16_f32 v{dst}, v{a0}, v{a0+1}
        v_cvt_pk_bf16_f32 v{dst+1}, v{a0+2}, v{a0+3}
        v_cvt_pk_bf16_f32 v{dst+2}, v{a1}, v{a1+1}
        v_cvt_pk_bf16_f32 v{dst+3}, v{a1+2}, v{a1+3}
        """)

    loop(0)
    epi_common()
    e(f"""
    s_mov_b32 s64, {LOG2E}
    s_mov_b32 s65, {LOG2E}
    s_mov_b32 s66, {EPS}
    s_lshl_b32 s67, {sIDX}, 1
    s_add_u32 s67, s67, {sJ}
    s_lshl_b32 s5, s67, 10
    s_add_u32 s5, s5, {WS_PQ}
    """)
    P = T + 16
    for m in range(8):
        phi4(acc(0, 0, m), P); phi4(acc(0, 1, m), P + 4)
        blockbase(m, "s4", 32, "s5")
        r = tq()
        pack8(r, acc(0, 0, m), acc(0, 1, m))
        e(f"buffer_store_dwordx4 {vr(r)}, v{vL16}, {SW}, s4 offen {ST}")
    KV = acc(0, 0, 0)
    Z = KV + 16; ONES = KV + 24
    for i in range(4): e(f"v_mov_b32 v{ONES+i}, 0x3f803f80")
    for u in range(4):
        for t in range(2):
            phi4(acc(1, t, 2 * u), P); phi4(acc(1, t, 2 * u + 1), P + 4)
            pack8(acc(1, t, 2 * u), acc(1, t, 2 * u), acc(1, t, 2 * u + 1))
        for t in range(2):
            pack8(acc(2, t, 2 * u), acc(2, t, 2 * u), acc(2, t, 2 * u + 1))
        e("s_nop 1")
        for td in range(2):
            for te in range(2):
                d = vr(KV + (td * 2 + te) * 4)
                e(mfma(d, vr(acc(1, td, 2 * u)), vr(acc(2, te, 2 * u)), None if u else "0"))
            d = vr(Z + td * 4)
            e(mfma(d, vr(acc(1, td, 2 * u)), vr(ONES), None if u else "0"))
    e(f"""
    s_mul_i32 s4, {sJ}, 6144
    s_add_u32 s4, s4, {SPARE}
    v_add_u32 v{T}, s4, v{vL16}
    s_nop 7
    s_cmp_eq_u32 {sI}, 0
    s_cbranch_scc1 L1_q_rd
    """)
    for i in range(6): e(f"ds_write_b128 v{T}, {vr(KV+i*4)} offset:{i*1024}")
    e(f"""
    s_waitcnt vmcnt({10 + XT}) lgkmcnt(0)
    s_barrier
    s_branch L1_gate
    L1_q_rd:
    s_barrier
    """)
    R = KV + 32
    for i in range(6): e(f"ds_read_b128 {vr(R+i*4)}, v{T} offset:{i*1024}")
    e(f"""
    s_lshl_b32 s4, s67, 3
    s_add_u32 s4, s4, {sMT}
    s_lshl_b32 s4, s4, 12
    s_add_u32 s4, s4, {WS_KVP}
    s_lshl_b32 s5, s67, 10
    s_lshl_b32 s6, {sMT}, 6
    s_add_u32 s5, s5, s6
    s_add_u32 s5, s5, {WS_ZP}
    v_and_b32 v{T+1}, 48, v{vL}
    s_waitcnt lgkmcnt(0)
    """)
    for i in range(12): e(f"v_pk_add_f32 {vr(KV+i*2,2)}, {vr(KV+i*2,2)}, {vr(R+i*2,2)}")
    for i in range(4): e(f"buffer_store_dwordx4 {vr(KV+i*4)}, v{vL16}, {SW}, s4 offen offset:{i*1024} {ST}")
    e(f"""
    s_mov_b64 s[6:7], exec
    s_mov_b32 exec_lo, 0x00010001
    s_mov_b32 exec_hi, 0x00010001
    buffer_store_dwordx4 {vr(Z)}, v{T+1}, {SW}, s5 offen {ST}
    buffer_store_dwordx4 {vr(Z+4)}, v{T+1}, {SW}, s5 offen offset:512 {ST}
    s_mov_b64 exec, s[6:7]
    s_waitcnt vmcnt({16 + XT})
    s_branch L1_gate
    """)
    loop(1)
    epi_common()
    for m in range(8):
        blockbase(m, "s4", A2_KB, "s63")
        relu_store(acc(0, 0, m), acc(0, 1, m), "s4", 0)
        relu_store(acc(1, 0, m), acc(1, 1, m), "s4", 2048)
        e("s_add_u32 s5, s4, 4096")
        relu_store(acc(2, 0, m), acc(2, 1, m), "s5", 0)
    G0 = ACC + 64
    e(f"s_waitcnt vmcnt({26 + XT})")
    e("L1_gate:")
    stamp(e, 3, cfg)
    for i in range(32): e(f"v_accvgpr_read_b32 v{G0+i}, a{GX+i}")
    e(f"v_mov_b32 v{G0+32}, 0")
    e(f"v_mov_b32 v{G0+33}, 0")
    for i in range(16): e(f"v_dot2c_f32_bf16 v{G0+32+(i&1)}, v{G0+i}, v{G0+16+i}")
    g = G0 + 32
    e(f"""
    s_nop 2
    v_add_f32 v{g}, v{g}, v{g+1}
    s_nop 1
    v_add_f32_dpp v{g}, v{g}, v{g} quad_perm:[1,0,3,2] row_mask:0xf bank_mask:0xf
    s_nop 1
    v_add_f32_dpp v{g}, v{g}, v{g} quad_perm:[2,3,0,1] row_mask:0xf bank_mask:0xf
    s_nop 1
    v_add_f32_dpp v{g}, v{g}, v{g} row_half_mirror row_mask:0xf bank_mask:0xf
    s_nop 1
    v_add_f32_dpp v{g}, v{g}, v{g} row_mirror row_mask:0xf bank_mask:0xf
    s_nop 1
    v_add_f32_dpp v{g}, v{g}, v{g} row_bcast:15 row_mask:0xa bank_mask:0xf
    v_mul_f32 v{g}, 0xbfb8aa3b, v{g}
    v_exp_f32 v{g}, v{g}
    v_lshrrev_b32 v{g+1}, 5, v{vL}
    v_add_f32 v{g}, 1.0, v{g}
    v_rcp_f32 v{g}, v{g}
    v_lshlrev_b32 v{g+1}, 2, v{g+1}
    s_lshl_b32 s4, s2, 2
    s_add_u32 s4, s4, {sW}
    s_lshl_b32 s5, s4, 3
    s_add_u32 s5, s5, {WS_G}
    s_mov_b32 exec_lo, 0x80000000
    s_mov_b32 exec_hi, 0x80000000
    buffer_store_dword v{g}, v{g+1}, {SW}, s5 offen {ST}
    s_mov_b64 exec, 15
    v_mov_b32 v{g+2}, 0
    v_lshlrev_b32 v{g+3}, 2, v{vL}
    s_lshl_b32 s5, s2, 7
    s_lshl_b32 s6, {sW}, 4
    s_add_u32 s5, s5, s6
    s_add_u32 s6, s5, {WS_FLAG}
    s_add_u32 s5, s5, {WS_CNT}
    buffer_store_dword v{g+2}, v{g+3}, {SW}, s6 offen {ST}
    buffer_store_dword v{g+2}, v{g+3}, {SW}, s5 offen {ST}
    s_mov_b64 exec, -1
    """)
    if cfg.get("stamps"):
        stamp(e, 4, cfg)
        e("s_waitcnt vmcnt(0)")
        stamp(e, 5, cfg)
        stamp_flush(e, cfg, 8, 0, SW, "L1_st")
        e(f"""
        v_lshlrev_b32 v1, 2, v0
        v_cmp_gt_u32 vcc, 8, v0
        s_and_saveexec_b64 s[68:69], vcc
        s_cbranch_execz L1_st2
        buffer_store_dword a225, v1, {SW}, s3 offen offset:32
        L1_st2:
        """)
    e("L1_end:")
    e("s_endpgm")
    return K, e.text(), dict(vgpr=512, accum=256, sgpr=102)


class VQ:
    def __init__(self, init=()):
        self.q = list(init)
    def op(self, tag): self.q.append(tag)
    def need(self, *tags):
        last = max((i for i, t in enumerate(self.q) if t in tags), default=-1)
        n = len(self.q) - 1 - last
        self.q = self.q[last + 1:]
        assert n <= 63
        return n


class Gaps:
    def __init__(self, n):
        self.n = n; self.load = [0] * n; self.items = []
    @staticmethod
    def w(x):
        if isinstance(x, list): return sum(Gaps.w(y) for y in x)
        t = x[0] if isinstance(x, tuple) else x
        if t.endswith(":"): return 0
        return 2 if t.startswith(("buffer", "v_exp", "v_rcp", "v_mfma")) else 1
    def put(self, p, x):
        self.items.append((p, x)); self.load[p] += self.w(x)
    def seq(self, xs, lo, hi, cap=2):
        pos = []; p = lo
        for i, x in enumerate(xs):
            p = max(p, lo + (i * (hi - lo)) // len(xs))
            q = p
            while q < hi and self.load[q] + self.w(x) > cap: q += 1
            if q >= hi:
                q = min(range(p, hi), key=lambda z: self.load[z])
            self.put(q, x); pos.append(q); p = q
        return pos


def gen_k2(cfg):
    e = Em()
    K = "gm2_kernel"
    SW, SB, SO, SB2 = "s[8:11]", "s[12:15]", "s[16:19]", "s[20:23]"
    sW, sRB, sNB, sKQ, sI, sJ = "s24", "s25", "s26", "s27", "s28", "s29"
    sAr = ["s30", "s31"]; sAo = "s32"; sBl = ["s33", "s34"]; sBo = "s35"
    sLa, sLb = "s36", "s37"
    sCol, sMT, sHD, sM16, sCntP, sCntC, sXo, sT = "s50", "s51", "s52", "s53", "s54", "s55", "s56", "s57"
    sXi = [None, "s58", "s59", "s60"]; sFl = "s61"
    vL, vL16, vA2 = 1, 2, 3
    vB = 4
    rA, rB = 6, 9
    vOne, vFa = 15, 16
    vG = 20
    vFl = 44
    T = 24
    ACC = 48
    def acc(R, L, t, m): return ACC + (((R * 2 + L) * 2 + t) * 4 + m) * 4
    AA = ACC + 128
    def acca(t, m): return AA + (t * 4 + m) * 4
    def afr(buf, R, m, ks): return buf * 64 + ((R * 4 + m) * 2 + ks) * 4
    def bfr(L, t, ks): return 128 + ((L * 2 + t) * 2 + ks) * 4
    SLOT, NR = 24576, 6
    SPARE = SLOT * NR
    NS1, NS2 = 14, 16
    NP1 = 2 * NS1; NP = NP1 + NS2

    e(f"""
    s_cmp_ge_u32 s2, 256
    s_cbranch_scc1 L2_end
    """)
    stamp(e, 0, cfg)
    e(f"""
    s_load_dwordx2 s[46:47], s[0:1], 72
    s_load_dwordx2 s[42:43], s[0:1], 40
    s_load_dwordx2 s[40:41], s[0:1], 16
    s_load_dwordx2 s[44:45], s[0:1], 56
    v_lshrrev_b32 v{T}, 6, v0
    v_and_b32 v{vL}, 63, v0
    v_readfirstlane_b32 {sW}, v{T}
    v_lshlrev_b32 v{vL16}, 4, v{vL}
    v_add_u32 v{vA2}, {A2_KB*1024 - 2048}, v{vL16}
    s_mov_b32 s63, s2
    """)
    XM = {0: None, 1: [3, 4, 5, 0, 1, 2, 6, 7], 2: [0, 3, 1, 4, 5, 2, 6, 7], 3: [3, 0, 1, 4, 5, 2, 6, 7]}[cfg.get("xmap", 0)]
    if XM:
        e("s_and_b32 s2, s63, 0xc0")
        for lb, pb in enumerate(XM[:6]):
            e(f"s_bfe_u32 s3, s63, {0x10000 | pb}\ns_lshl_b32 s3, s3, {lb}\ns_or_b32 s2, s2, s3")
    e(f"""
    s_and_b32 {sKQ}, s2, 3
    s_and_b32 s3, s2, 4
    s_bfe_u32 s4, s2, 0x20003
    s_add_u32 {sRB}, s3, s4
    s_lshr_b32 {sNB}, s2, 5
    s_lshr_b32 {sI}, {sW}, 1
    s_and_b32 {sJ}, {sW}, 1
    s_lshl_b32 {sLa}, {sW}, 12
    s_lshl_b32 {sLb}, {sW}, 11
    s_lshl_b32 s3, {sRB}, 4
    s_lshl_b32 s4, {sW}, 1
    s_add_u32 s3, s3, s4
    s_lshl_b32 s4, {sKQ}, 2
    s_and_b32 s4, s4, 8
    s_add_u32 s5, s3, s4
    s_xor_b32 s6, s5, 8
    s_mul_i32 s5, s5, {A2_KB*1024}
    s_mul_i32 s6, s6, {A2_KB*1024}
    s_mul_i32 s7, {sKQ}, {28*1024}
    s_add_u32 {sAo}, s5, {112*1024}
    s_add_u32 {sAr[0]}, s5, s7
    s_add_u32 {sAr[1]}, s6, s7
    s_mov_b32 s10, {WS_SIZE}
    s_mov_b32 s11, 0x20000
    s_waitcnt lgkmcnt(0)
    s_mov_b32 s8, s46
    s_mov_b32 s9, s47
    """)
    stamp(e, 1, cfg, 2)

    def grpA(u, sreg, fl=""):
        r = [f"s_add_u32 m0, {sLa}, {(u % NR) * SLOT}"]
        r += [(f"buffer_load_dwordx4 v{vL16 if q < 2 else vA2}, {SW}, {sreg} offen offset:{q*1024} {fl}lds", ("u", u)) for q in range(4)]
        return r + [f"s_add_u32 {sreg}, {sreg}, 2048"]

    def grpB(u, srd, sreg):
        r = [f"s_add_u32 m0, {sLb}, {(u % NR) * SLOT + 16384}"]
        r += [(f"buffer_load_dwordx4 v{vB+q}, {srd}, {sreg} offen offset:{q*1024} lds", ("u", u)) for q in range(2)]
        return r + [f"s_add_u32 {sreg}, {sreg}, {64*2048}"]

    def slot(u):
        if u == 0: return grpA(0, sAr[0])
        if u == 1: return grpA(1, sAr[1]) + grpB(1, SB, sBl[0])
        if u == NP1: return grpB(u, SB, sBl[1])
        if u > NP1: return grpB(u, SB2, sBo) + grpA(u, sAo, "sc1 ")
        return grpB(u, SB, sBl[1 - (u & 1)]) + grpA(u, sAr[u & 1])

    def reads(u):
        st, off = (u % NR) // 2, ((u % NR) & 1) * SLOT
        if u <= NP1:
            R = u & 1; buf = (u // 2) & 1; L = 1 - (u & 1)
            hasA, hasB = u < NP1, u > 0
        else:
            s2 = u - NP1 - 1
            R = 0; buf = (NS1 + s2) & 1; L = s2 & 1
            hasA = hasB = True
        ra = [f"ds_read_b128 {ar(afr(buf, R, m, ks))}, v{rA+st} offset:{off + m*2048 + ks*1024}" for m in range(4) for ks in range(2)] if hasA else []
        rb = [f"ds_read_b64_tr_b16 {ar(bfr(L, t, ks)+hf*2, 2)}, v{rB+t+2*st} offset:{off + ks*4096 + hf*2048}"
              for t in range(2) for ks in range(2) for hf in range(2)] if hasB else []
        out = []
        for i in range(8): out += rb[i:i+1] + ra[i:i+1]
        return out

    vq = VQ()
    born = {}; cur = [-1]
    AGE = {"cnt": 2, "pf": cfg.get("agepf", 1), "o": 2, "opq": 2, "ost": 3, "xst": cfg.get("agex", 2), ("rx", 1): cfg.get("agerx", 2), ("rx", 2): cfg.get("agerx", 2), ("rx", 3): cfg.get("agerx", 2)}
    def emit(x):
        if isinstance(x, list):
            for y in x: emit(y)
            return
        tag = None
        if isinstance(x, tuple): x, tag = x
        e(x)
        if x.startswith("buffer"):
            assert tag is not None, x
            vq.op(tag); born[tag] = cur[0]
    def burst(g):
        for x in g:
            emit(x)
            if isinstance(x, str) and " m0," in x: e("s_nop 0")

    burst(slot(0))
    burst(slot(1)[:6])
    e(f"""
    s_lshl_b32 s3, {sNB}, 1
    s_and_b32 s4, {sKQ}, 1
    s_add_u32 s3, s3, s4
    s_lshl_b32 {sCol}, s3, 7
    s_lshl_b32 s4, {sW}, 15
    s_add_u32 {sBo}, s4, {sCol}
    s_mul_i32 s5, {sKQ}, {896*2048}
    s_add_u32 {sBl[1]}, {sBo}, s5
    s_xor_b32 {sBl[0]}, {sBl[1]}, 128
    v_lshrrev_b32 v{T}, 3, v{vL}
    v_lshrrev_b32 v{T+1}, 4, v{vL}
    v_and_b32 v{T+2}, 7, v{vL}
    v_lshlrev_b32 v{T+3}, 1, v{T+1}
    v_xor_b32 v{T+3}, v{T+3}, v{T+2}
    v_lshlrev_b32 v{T+3}, 4, v{T+3}
    v_lshl_add_u32 v{vB}, v{T}, 11, v{T+3}
    v_add_u32 v{vB+1}, {16384-1024}, v{vB}
    s_mov_b32 s12, s42
    s_mov_b32 s13, s43
    s_mov_b32 s14, {3584*2048}
    s_mov_b32 s15, 0x20000
    """)
    burst(slot(1)[6:])
    burst(slot(2))
    stamp(e, 2, cfg, 2)
    vZa, vGa = T + 8, T + 9
    e(f"""
    s_mov_b32 s16, s44
    s_mov_b32 s17, s45
    s_mov_b32 s18, {2048*2048}
    s_mov_b32 s19, 0x20000
    s_mov_b32 s20, s40
    s_mov_b32 s21, s41
    s_mov_b32 s22, {1024*2048}
    s_mov_b32 s23, 0x20000
    s_lshl_b32 s4, {sI}, 13
    v_add_u32 v{rA}, s4, v{vL16}
    v_add_u32 v{rA+1}, {2*SLOT}, v{rA}
    v_add_u32 v{rA+2}, {4*SLOT}, v{rA}
    v_lshlrev_b32 v{vZa}, 6, v{T+2}
    v_lshl_add_u32 v{vZa}, v{T+1}, 4, v{vZa}
    v_lshrrev_b32 v{T+3}, 2, v{vL}
    v_lshlrev_b32 v{T+3}, 7, v{T+3}
    v_bfe_u32 v{T+4}, v{vL}, 3, 2
    s_lshl_b32 s4, {sJ}, 1
    v_xor_b32 v{T+4}, s4, v{T+4}
    v_lshl_add_u32 v{T+3}, v{T+4}, 5, v{T+3}
    v_and_b32 v{T+4}, 3, v{vL}
    v_lshl_add_u32 v{T+3}, v{T+4}, 3, v{T+3}
    v_add_u32 v{rB}, 16384, v{T+3}
    v_xor_b32 v{rB+1}, 32, v{rB}
    v_add_u32 v{rB+2}, {2*SLOT}, v{rB}
    v_add_u32 v{rB+3}, {2*SLOT}, v{rB+1}
    v_add_u32 v{rB+4}, {4*SLOT}, v{rB}
    v_add_u32 v{rB+5}, {4*SLOT}, v{rB+1}
    v_mov_b32 v{vOne}, 1
    v_xor_b32 v{vFa}, s2, v{T+4}
    v_lshlrev_b32 v{vFa}, 7, v{vFa}
    v_lshl_add_u32 v{vFa}, v{T+4}, 2, v{vFa}
    v_and_b32 v{vGa}, 15, v{vL}
    v_lshlrev_b32 v{vGa}, 2, v{vGa}
    s_lshr_b32 {sMT}, s63, 5
    s_and_b32 s3, s63, 7
    s_lshl_b32 s3, s3, 2
    s_bfe_u32 s4, s63, 0x20003
    s_add_u32 {sHD}, s3, s4
    s_lshl_b32 {sM16}, {sMT}, 4
    s_lshl_b32 s5, {sW}, 2
    s_add_u32 {sM16}, {sM16}, s5
    s_lshl_b32 {sCntP}, {sMT}, 7
    s_add_u32 {sCntP}, {sCntP}, {WS_CNT}
    s_lshl_b32 {sCntC}, {sRB}, 7
    s_add_u32 {sCntC}, {sCntC}, {WS_CNT}
    s_lshl_b32 s4, {sW}, 4
    s_add_u32 {sFl}, s4, {WS_FLAG}
    s_lshl_b32 s3, s2, 16
    s_add_u32 s4, {sLa}, {WS_XCH}
    s_add_u32 {sXo}, s3, s4
    """)
    for d in (1, 2, 3):
        e(f"s_xor_b32 s5, s3, {d << 16}")
        e(f"s_add_u32 s5, s5, s4")
        e(f"s_add_u32 {sXi[d]}, s5, {d << 14}")
    stamp(e, 3, cfg, 2)
    e(f"s_waitcnt vmcnt({vq.need(('u', 1))})")
    e("s_barrier")
    stamp(e, 1, cfg); stamp(e, 4, cfg, 2)
    rd = reads(1) + reads(0)
    for x in rd[:10]: e(x)
    g3 = slot(3)
    for i in range(len(g3)):
        emit(g3[i])
        for x in rd[10 + (i * 14) // len(g3):10 + ((i + 1) * 14) // len(g3)]: e(x)
    stamp(e, 5, cfg, 2)
    e(f"s_waitcnt vmcnt({vq.need(('u', 2))}) lgkmcnt(0)")
    e("s_barrier")
    stamp(e, 2, cfg); stamp(e, 6, cfg, 2); stamp(e, 7, cfg, 2)

    KP, ZPv, PQv = AA, 208, 216
    oloads = [f"s_lshl_b32 {sT}, {sHD}, 15", f"s_lshl_b32 s5, {sW}, 10", f"s_add_u32 {sT}, {sT}, s5", f"s_add_u32 {sT}, {sT}, {WS_KVP}"]
    for p in range(8):
        oloads += [(f"buffer_load_dwordx4 {vr(KP+p*4)}, v{vL16}, {SW}, {sT} offen", "o")] + ([f"s_add_u32 {sT}, {sT}, 4096"] if p < 7 else [])
    oloads += [f"s_lshl_b32 {sT}, {sHD}, 10", f"s_add_u32 {sT}, {sT}, {WS_ZP}",
               (f"buffer_load_dwordx4 {vr(ZPv)}, v{vZa}, {SW}, {sT} offen", "o"),
               (f"buffer_load_dwordx4 {vr(ZPv+4)}, v{vZa}, {SW}, {sT} offen offset:512", "o"),
               f"s_lshl_b32 {sT}, {sM16}, 5", f"s_add_u32 {sT}, {sT}, {sHD}", f"s_lshl_b32 {sT}, {sT}, 10", f"s_add_u32 {sT}, {sT}, {WS_PQ}"]
    for m in range(4):
        oloads += [(f"buffer_load_dwordx4 {vr(PQv+m*4)}, v{vL16}, {SW}, {sT} offen", "opq")] + ([f"s_add_u32 {sT}, {sT}, 32768"] if m < 3 else [])
    o1 = []
    for stp in (4, 2, 1):
        for p in range(stp):
            for h in range(4):
                o1.append(f"v_add_f32 v{KP+p*4+h}, v{KP+p*4+h}, v{KP+(p+stp)*4+h}")
    o1 += [f"v_cvt_pk_bf16_f32 v{KP}, v{KP}, v{KP+1}", f"v_cvt_pk_bf16_f32 v{KP+1}, v{KP+2}, v{KP+3}",
           f"s_lshl_b32 s4, {sJ}, 10", f"s_lshl_b32 s5, {sI}, 3", "s_add_u32 s4, s4, s5", f"s_add_u32 s4, s4, {SPARE}",
           f"v_add_u32 v{T}, s4, v{vL16}", f"v_add_u32 v{T+1}, {SPARE}, v{vL16}", f"ds_write_b64 v{T}, {vr(KP,2)}"]
    o2 = [f"ds_read_b128 {vr(KP+4)}, v{T+1}", f"ds_read_b128 {vr(KP+8)}, v{T+1} offset:1024"]
    for dpp in ("quad_perm:[1,0,3,2]", "quad_perm:[2,3,0,1]", "row_half_mirror"):
        for i in range(8):
            o2.append(f"v_add_f32_dpp v{ZPv+i}, v{ZPv+i}, v{ZPv+i} {dpp} row_mask:0xf bank_mask:0xf")
    o2 += [f"v_cvt_pk_bf16_f32 v{ZPv+i}, v{ZPv+2*i}, v{ZPv+2*i+1}" for i in range(4)]
    sT2 = "s62"
    o2 += [f"s_mul_i32 {sT2}, {sM16}, {A2_KB*1024}", f"s_add_u32 s5, {sHD}, 112", "s_lshl_b32 s5, s5, 10", f"s_add_u32 {sT2}, {sT2}, s5"]
    def oreg(m, k):
        return [232, KP + 12][m & 1] + k * 4
    def o3m(m):
        return [mfma(vr(oreg(m, 0)), vr(ZPv), vr(PQv + m * 4), "0"), mfma(vr(oreg(m, 1)), vr(KP + 4), vr(PQv + m * 4), "0"),
                mfma(vr(oreg(m, 2)), vr(KP + 8), vr(PQv + m * 4), "0")]
    def o3v(m):
        d, o = oreg(m, 0), oreg(m, 1)
        r = [f"v_add_f32 v{d}, {EPS:#x}, v{d}", f"v_rcp_f32 v{d}, v{d}", "s_nop 0"]
        r += [f"v_mul_f32 v{o+h}, v{d}, v{o+h}" for h in range(8)]
        r += [f"v_cvt_pk_bf16_f32 v{PQv+m*4+h}, v{o+h*2}, v{o+h*2+1}" for h in range(4)]
        r += [(f"buffer_store_dwordx4 {vr(PQv+m*4)}, v{vL16}, {SW}, {sT2} offen sc1", "ost")]
        if m < 3: r += [f"s_add_u32 {sT2}, {sT2}, {A2_KB*1024}"]
        return r
    gloads = [f"s_lshl_b32 s4, {sRB}, 10", f"s_lshl_b32 s5, {sKQ}, 8", "s_and_b32 s5, s5, 512", "s_add_u32 s4, s4, s5",
              f"s_lshl_b32 s5, {sI}, 8", "s_add_u32 s4, s4, s5", f"s_add_u32 {sT}, s4, {WS_G}"]
    gloads += [(f"buffer_load_dword v{vG+m}, v{vGa}, {SW}, {sT} offen offset:{m*64}", "g") for m in range(4)]

    tq = [0]
    def send(R, L):
        d = (R << 1) | (1 - L)
        out = []
        for m in range(4):
            r = [f"s_add_u32 {sT2}, {sXo}, {d << 14}"] if m == 0 else []
            x = T + 4 * (tq[0] % 4); tq[0] += 1
            for t in range(2):
                for h in range(2):
                    r.append(f"v_cvt_pk_bf16_f32 v{x+2*t+h}, v{acc(R,L,t,m)+2*h}, v{acc(R,L,t,m)+2*h+1}")
            r.append((f"buffer_store_dwordx4 {vr(x)}, v{vL16}, {SW}, {sT2} offen offset:{m*1024} sc1", "xst"))
            out.append(r)
        return out
    sends = send(0, 0) + send(1, 0) + send(1, 1)
    SPLAN = [int(c) for c in str(cfg.get("splan", "84"))]
    RPLAN = str(cfg.get("rplan", "12"))
    RX = acc(1, 0, 0, 0)
    def rx(d, m): return RX + ((d - 1) * 4 + m) * 4
    def recv(d):
        return [(f"buffer_load_dwordx4 {vr(rx(d, m))}, v{vL16}, {SW}, {sXi[d]} offen offset:{m*1024} sc1", ("rx", d)) for m in range(4)]
    def addrx(d):
        r = []
        for m in range(4):
            for t in range(2):
                for h in range(2):
                    s_ = rx(d, m) + 2 * t + h; b = acc(0, 1, t, m) + 2 * h; x = T + 2 * ((2 * t + h) & 1)
                    r += [f"v_lshlrev_b32 v{x}, 16, v{s_}", f"v_and_b32 v{x+1}, 0xffff0000, v{s_}", f"v_pk_add_f32 {vr(b,2)}, {vr(b,2)}, {vr(x,2)}"]
        return r

    def spin(lab, load, test):
        e(f"""
        {test}
        s_cbranch_scc1 {lab}_ok
        s_mov_b32 s5, 0
        {lab}_spin:
        s_add_u32 s5, s5, 1
        s_cmp_gt_u32 s5, 0x40000
        s_cbranch_scc1 {lab}_ok
        s_sleep 1
        {load}
        s_waitcnt vmcnt(0)
        {test}
        s_cbranch_scc0 {lab}_spin
        {lab}_ok:
        """)
    cnt_load = f"buffer_load_dword v{vFl}, off, {SW}, {sCntC} sc1"
    cnt_test = f"v_readfirstlane_b32 s4, v{vFl}\ns_nop 0\ns_cmp_ge_u32 s4, 32"
    fl_load = f"buffer_load_dwordx4 {vr(vFl)}, off, {SW}, {sT} sc1"
    fl_test = f"v_and_b32 v{vFl}, v{vFl+1}, v{vFl+2}\nv_and_b32 v{vFl}, v{vFl}, v{vFl+3}\ns_nop 0\nv_readfirstlane_b32 s4, v{vFl}\ns_nop 0\ns_cmp_eq_u32 s4, 1"

    RATE = cfg.get("rate", 8)
    OAT = cfg.get("oat", 4)
    stream = []
    for u in range(4, NP + 1):
        stream += [(u - NR - 1, x) for x in slot(u)]
        if u >= OAT:
            k = cfg.get("oper", 2)
            while oloads and k > 0:
                x = oloads.pop(0); stream.append((0, x))
                if isinstance(x, tuple): k -= 1
    isv = lambda x: isinstance(x, tuple)
    state = dict(o=0, sig=False, cnt=None, fl=None, pf=None, rx=0, add=0)
    FPD = cfg.get("fpd", 2)
    for p in range(NP):
        ph1 = p < NP1
        cur[0] = p
        mf = []
        if ph1:
            J, L = p // 2, p & 1
            order = [(R, t) for t in range(2) for R in range(2)]
            if p == NP1 - 1: order = [(1, 0), (1, 1), (0, 0), (0, 1)]
            for R, t in order:
                for m in range(4):
                    for ks in range(2):
                        mf.append(mfma(vr(acc(R, L, t, m)), ar(bfr(L, t, ks)), ar(afr(J & 1, R, m, ks)), "0" if (J == 0 and ks == 0) else None))
        else:
            s2 = p - NP1
            for t in range(2):
                for m in range(4):
                    for ks in range(2):
                        mf.append(mfma(vr(acca(t, m)), ar(bfr(s2 & 1, t, ks)), ar(afr((NS1 + s2) & 1, 0, m, ks)), "0" if (s2 == 0 and ks == 0) else None))
        N = len(mf)
        G = Gaps(N)
        if cfg.get("pstamp"):
            if p > 0: G.put(0, f"v_writelane_b32 v17, s{64 + 2*((p-1)&1)}, {p-1}")
            e(f"s_memrealtime s[{64 + 2*(p&1)}:{65 + 2*(p&1)}]")
        if p == NP1: stamp(e, 4, cfg)
        nxt = []
        budget = RATE if ph1 else 6
        DPLAN = str(cfg.get("dplan", "00"))
        if 0 <= p - (NP1 - 1) < len(DPLAN): budget = int(DPLAN[p - (NP1 - 1)])
        while stream and stream[0][0] <= p and (budget > 0 or not isv(stream[0][1])):
            x = stream[0][1]
            if not isv(x) and budget == 0 and " m0," in x: break
            stream.pop(0); nxt.append(x)
            if isv(x): budget -= 1
        first_o = any(isv(x) and x[1] == ("u", NP1 + 1) and "sc1" in x[0] for x in nxt) and state["cnt"] != "done"
        if first_o:
            assert state["cnt"] == "loaded" and "cnt" not in vq.q
            stamp(e, 3, cfg)
            spin("L2_o", cnt_load, cnt_test); state["cnt"] = "done"
        pre = []
        if state["cnt"] is None and p == NP1 + 1 - NR - 1 - 3:
            pre.append((cnt_load, "cnt")); state["cnt"] = "loaded"
        if p == 16: pre += gloads
        if state["fl"] is None and p > NP1 and "xst" not in vq.q and not sends:
            pre.append(["s_mov_b64 exec, 14", (f"buffer_store_dword v{vOne}, v{vFa}, {SW}, {sFl} offen sc1", "fl"), "s_mov_b64 exec, -1"])
            state["fl"] = p
        elif state["fl"] is not None and state["pf"] is None and p >= state["fl"] + FPD:
            pre += [f"s_lshl_b32 {sT}, s2, 7", f"s_add_u32 {sT}, {sT}, {sFl}", (fl_load, "pf")]
            state["pf"] = p
        elif state["pf"] is not None and state["rx"] < 3 and "pf" not in vq.q:
            if state["rx"] == 0: spin("L2_p", fl_load, fl_test)
            k = int(RPLAN[0]) if nxt else int(RPLAN[1])
            for _ in range(k):
                if state["rx"] < 3:
                    state["rx"] += 1; pre += recv(state["rx"])
        vm = pre + nxt
        if vm:
            nv = sum(1 for x in vm if isv(x) or isinstance(x, list))
            k = 0; pend = []
            for x in vm:
                if isv(x) or isinstance(x, list):
                    pos = 1 + (k * (N - 1)) // nv; k += 1
                    for y in pend: G.put(pos - 1, y)
                    pend = []
                    G.put(pos, x); lastpos = pos
                else:
                    pend.append(x)
            for y in pend: G.put(min(N - 1, lastpos + 1), y)
        if p + 2 <= NP:
            G.seq(reads(p + 2), 0, N - (5 if ph1 else 2))
        if state["o"] == 0 and not any(isv(x) and x[1] == "o" for _, x in stream) and "o" not in vq.q and not any(isv(x) and x[1] == "o" for x in nxt):
            G.seq(o1, 0, N - 4); state["o"] = 1
        elif state["o"] == 1:
            G.seq(o2, 0, N - 2); state["o"] = 2
        elif state["o"] in (2, 3) and not any(isv(x) and x[1] == "opq" for _, x in stream) and "opq" not in vq.q and not any(isv(x) and x[1] == "opq" for x in nxt):
            m0 = (state["o"] - 2) * 2
            G.seq(o3m(m0) + o3m(m0 + 1), 0, 7, cap=3)
            G.seq(o3v(m0) + o3v(m0 + 1), 12, N); state["o"] += 1
        elif state["o"] == 4 and "ost" not in vq.q:
            state["sig"] = p
            state["o"] = 5
            G.put(1, [f"s_cmp_eq_u32 {sW}, 0", "s_cbranch_scc0 L2_nosig", "s_mov_b64 exec, 1",
                      f"buffer_atomic_add v{vOne}, off, {SW}, {sCntP}|x", "s_mov_b64 exec, -1", "L2_nosig:"])
        if 0 <= p - (NP1 - 1) < len(SPLAN):
            k = SPLAN[p - (NP1 - 1)]
            G.seq(sum(sends[:k], []), 6 if ph1 else 0, N, cap=3); del sends[:k]
        if state["add"] < state["rx"] and ("rx", state["add"] + 1) not in vq.q and not any(isv(x) and x[1] == ("rx", state["add"] + 1) for x in pre):
            state["add"] += 1
            G.seq(addrx(state["add"]), 0, N, cap=4)
        for x in place(mf, G.items):
            if isinstance(x, str) and x.endswith("|x"): e(x[:-2])
            else: emit(x)
        if p + 3 <= NP:
            assert not any(isv(x) and x[1] == ("u", p + 3) for _, x in stream), p
            old = [t for t in AGE if t in vq.q and p - born[t] >= AGE[t]]
            e(f"s_waitcnt vmcnt({vq.need(('u', p + 3), *old)}) lgkmcnt(0)")
            e("s_barrier")
        elif p + 2 <= NP:
            old = [t for t in AGE if t in vq.q and p - born[t] >= AGE[t]]
            e(f"s_waitcnt vmcnt({vq.need(*old)}) lgkmcnt(0)")
    assert state["o"] == 5 and state["cnt"] == "done" and state["pf"] is not None, state
    stamp(e, 5, cfg)
    if state["rx"] < 3:
        if state["rx"] == 0:
            e("s_waitcnt vmcnt(0)"); vq.q = []
            spin("L2_p", fl_load, fl_test)
        while state["rx"] < 3:
            state["rx"] += 1; emit(recv(state["rx"]))
    vOa = T + 16
    e(f"""
    v_and_b32 v{vOa}, 15, v{vL}
    v_bfe_u32 v{T+1}, v{vL}, 4, 1
    v_lshrrev_b32 v{T+2}, 5, v{vL}
    v_lshlrev_b32 v{vOa}, 11, v{vOa}
    v_lshl_add_u32 v{vOa}, v{T+1}, 5, v{vOa}
    v_lshl_add_u32 v{vOa}, v{T+2}, 4, v{vOa}
    s_lshl_b32 s4, {sRB}, 19
    s_lshl_b32 s5, {sKQ}, 17
    s_and_b32 s5, s5, {1 << 18}
    s_add_u32 s4, s4, s5
    s_lshl_b32 s5, {sI}, 17
    s_add_u32 s4, s4, s5
    s_lshl_b32 s5, {sJ}, 6
    s_add_u32 s4, s4, s5
    s_add_u32 s4, s4, {sCol}
    """)
    while state["add"] < 3:
        state["add"] += 1
        e(f"s_waitcnt vmcnt({vq.need(('rx', state['add']))})")
        for x in addrx(state["add"]): e(x)
    for m in range(4):
        gg = T + 4; og = T + 6
        e(f"v_mov_b32 v{gg}, v{vG+m}")
        e(f"v_sub_f32 v{og}, 1.0, v{vG+m}")
        for t in range(2):
            for h in range(2):
                b = acc(0, 1, t, m) + 2 * h; a = acca(t, m) + 2 * h
                e(f"v_pk_mul_f32 {vr(b,2)}, {vr(b,2)}, {vr(og,2)} op_sel_hi:[1,0]")
                e(f"v_pk_fma_f32 {vr(b,2)}, {vr(a,2)}, {vr(gg,2)}, {vr(b,2)} op_sel_hi:[1,0,1]")
        r = acc(0, 0, 0, m)
        for t in range(2):
            for h in range(2):
                e(f"v_cvt_pk_bf16_f32 v{r+2*t+h}, v{acc(0,1,t,m)+2*h}, v{acc(0,1,t,m)+2*h+1}")
        e(f"""
        s_nop 1
        v_permlane16_swap_b32 v{r}, v{r+2}
        v_permlane16_swap_b32 v{r+1}, v{r+3}
        buffer_store_dwordx4 {vr(r)}, v{vOa}, {SO}, s4 offen {cfg.get("sto", "sc1")}
        """)
        if m < 3: e(f"s_add_u32 s4, s4, {16*2048}")
    if cfg.get("stamps"):
        stamp(e, 6, cfg)
        e("s_waitcnt vmcnt(0)")
        stamp(e, 7, cfg)
        stamp_flush(e, cfg, 8, 1, SW, "L2_st")
        if cfg.get("pstamp"):
            e(f"""
            v_writelane_b32 v17, s{64 + 2*((NP-1)&1)}, {NP-1}
            v_lshlrev_b32 v1, 2, v0
            s_lshl_b32 s3, s2, 8
            s_add_u32 s3, s3, {WS_STAMP + 0x10000}
            s_cmp_eq_u32 {sW}, 0
            s_cbranch_scc0 L2_st2
            buffer_store_dword v17, v1, {SW}, s3 offen
            L2_st2:
            """)
    e("L2_end:")
    e("s_endpgm")
    if cfg.get("verbose"): print(state)
    return K, e.text(), dict(vgpr=416, accum=256, sgpr=96)


def gen_k3(cfg):
    kA, iA, kB, iB, own = [int(c) for c in cfg["probe"]]
    e = Em()
    e(f"""
    s_cmp_ge_u32 s2, 1
    s_cbranch_scc1 L3_end
    s_load_dwordx2 s[4:5], s[0:1], 72
    v_lshlrev_b32 v1, 6, v0
    v_mov_b32 v2, 0
    s_waitcnt lgkmcnt(0)
    s_mov_b32 s8, s4
    s_mov_b32 s9, s5
    s_mov_b32 s10, {WS_SIZE}
    s_mov_b32 s11, 0x20000
    s_mov_b32 s12, {WS_STAMP + kA*16384 + iA*4}
    s_mov_b32 s13, {WS_STAMP + kB*16384 + iB*4}
    buffer_load_dword v3, v{1 if own else 2}, s[8:11], s12 offen
    buffer_load_dword v4, v1, s[8:11], s13 offen
    s_waitcnt vmcnt(0)
    v_sub_u32 v3, v4, v3
    v_min_u32 v3, 20000, v3
    s_memrealtime s[14:15]
    s_waitcnt lgkmcnt(0)
    L3_spin:
    s_memrealtime s[16:17]
    s_waitcnt lgkmcnt(0)
    s_sub_u32 s16, s16, s14
    v_cmp_lt_u32 vcc, s16, v3
    s_nop 4
    s_cbranch_vccnz L3_spin
    L3_end:
    s_endpgm
    """)
    return "gm3_kernel", e.text(), dict(vgpr=8, accum=8, sgpr=32)


HEAD = """; Kernarg layout for this problem (80 bytes, ptrs only, base s[0:1]):
;   offset   0: d_in[0] A_x  shape=(1, 2048, 1024) dtype=bfloat16
;   offset   8: d_in[1] A_wqkv  shape=(1024, 3072) dtype=bfloat16
;   offset  16: d_in[2] A_wo  shape=(1024, 1024) dtype=bfloat16
;   offset  32: d_in[4] B_w1  shape=(1024, 3584) dtype=bfloat16
;   offset  40: d_in[5] B_w2  shape=(3584, 1024) dtype=bfloat16
;   offset  48: d_in[6] gate_w  shape=(1024,) dtype=bfloat16
;   offset  56: d_out     shape=(1, 2048, 1024) dtype=bfloat16
"""


def build(cfg=None):
    cfg = cfg or {}
    ks = [gen_k1(cfg), gen_k2(cfg)]
    s = HEAD
    order = cfg.get("order", "12")
    if "0" in order:
        ks.append(("gm0_kernel", "  s_endpgm\n", dict(vgpr=8, accum=8, sgpr=16)))
    if "3" in order:
        ks.append(gen_k3(cfg))
    for c in order:
        s += f"; @launch kernel=gm{c}_kernel grid=(256,1,1) block=(256,1,1) lds={163840 if c in '12' else 0}\n"
    s += '.amdgcn_target "amdgcn-amd-amdhsa--gfx950"\n.text\n'
    for k, body, d in ks:
        s += f".globl {k}\n.p2align 8\n.type {k},@function\n{k}:\n" + body
    s += 'gm_text_end:\n.section .rodata,"a"\n'
    for k, body, d in ks:
        s += f""".p2align 6
.amdhsa_kernel {k}
  .amdhsa_next_free_vgpr {d['vgpr']}
  .amdhsa_next_free_sgpr {d['sgpr']}
  .amdhsa_accum_offset {d['accum']}
  .amdhsa_group_segment_fixed_size 0
  .amdhsa_kernarg_size 80
  .amdhsa_user_sgpr_count 2
  .amdhsa_user_sgpr_kernarg_segment_ptr 1
  .amdhsa_system_sgpr_workgroup_id_x 1
  .amdhsa_float_denorm_mode_32 3
.end_amdhsa_kernel
"""
    return s


if __name__ == "__main__":
    out = sys.argv[1] if len(sys.argv) > 1 else f"cdna_kernels/{NAME}.s"
    cfg = {}
    for a in sys.argv[2:]:
        k, v = a.split("=")
        cfg[k] = int(v) if (v.lstrip("-").isdigit() and k not in ("order", "probe", "dplan", "splan", "rplan")) else v
    txt = build(cfg)
    import hazard
    assert hazard.check(txt) == 0
    open(out, "w").write(txt)
    print("wrote", out)
```

```python
import sys

NAME = "gated_mix__linear_attn_block__dense_activation_relu__prompt"

A2_KB = 144
WS_A2 = 0
WS_PQ = 0x1200000
WS_KVP = 0x1600000
WS_ZP = 0x1700000
WS_G = 0x1710000
WS_FLAG = 0x1720000
WS_CNT = 0x1730000
WS_STAMP = 0x1740000
WS_XCH = 0x1800000
WS_SIZE = 0x2800000

LOG2E = 0x3fb8aa3b
EPS = 0x358637bd


class Em:
    def __init__(self):
        self.l = []

    def __call__(self, s):
        for x in s.strip("\n").split("\n"):
            x = x.strip()
            if x:
                self.l.append(x if x.endswith(":") else "  " + x)

    def text(self):
        return "\n".join(self.l) + "\n"


def place(mf, items):
    by = {}
    for p, ins in items:
        by.setdefault(p, []).extend(ins if isinstance(ins, list) else [ins])
    out = list(by.get(-1, []))
    for i, x in enumerate(mf):
        out.append(x)
        out += by.get(i, [])
    assert all(-1 <= p < len(mf) for p in by), (sorted(by), len(mf))
    return out


def vr(b, n=4, c="v"):
    return f"{c}[{b}:{b+n-1}]" if n > 1 else f"{c}{b}"


def ar(b, n=4):
    return vr(b, n, "a")


def mfma(d, a, b, c=None):
    return f"v_mfma_f32_16x16x32_bf16 {d}, {a}, {b}, {d if c is None else c}"


def spread(n, lo, hi, avoid=()):
    free = [p for p in range(lo, hi) if p not in avoid]
    return [free[(i * len(free)) // n] for i in range(n)]


def stamp(e, idx, cfg, mode=1):
    if cfg.get("stamps") and (cfg.get("smode", 1) == mode or idx == 0):
        e(f"s_memrealtime s[{70+2*idx}:{71+2*idx}]")


def stamp_flush(e, cfg, nst, kidx, srd, lab):
    if not cfg.get("stamps"):
        return
    e("s_waitcnt lgkmcnt(0)")
    for i in range(nst):
        e(f"v_mov_b32 v{2+i}, s{70+2*i}")
    e(f"""
    s_lshl_b32 s3, s2, 6
    s_add_u32 s3, s3, {WS_STAMP + kidx*16384}
    v_mov_b32 v1, 0
    v_cmp_eq_u32 vcc, 0, v0
    s_and_saveexec_b64 s[68:69], vcc
    s_cbranch_execz {lab}
    buffer_store_dwordx4 v[2:5], v1, {srd}, s3 offen
    buffer_store_dwordx4 v[6:9], v1, {srd}, s3 offen offset:16
    {lab}:
    s_mov_b64 exec, s[68:69]
    """)


def gen_k1(cfg):
    e = Em()
    K = "gm1_kernel"
    ST = cfg.get("st1", "sc1")
    SA, SB0, SB1, SW = "s[8:11]", "s[12:15]", "s[16:19]", "s[20:23]"
    sW, sMT, sTYPE, sIDX, sSH, sQD = "s24", "s25", "s26", "s27", "s28", "s29"
    sAlo, sAhi, sB0, sB1, sB0st, sB1st, sLds, sIt = "s30", "s31", "s32", "s33", "s34", "s35", "s36", "s37"
    sI, sJ = "s38", "s39"
    vL, vL16 = 1, 2
    vA, vB0, vB1 = 4, 8, 12
    rA, rB = 16, 20
    T = 24
    ACC = 48
    def acc(L, t, m):
        if L == 3:
            return ACC + 192 + (t * 2 + m) * 4
        return ACC + ((L * 2 + t) * 8 + m) * 4
    def afr(buf, m, ks): return buf * 64 + (m * 2 + ks) * 4
    def bfr(L, t, ks): return 128 + ((L * 2 + t) * 2 + ks) * 4
    GX = 192

    SPARE = 131072
    PF = cfg.get("pf", 4)
    LEAD = cfg.get("lead", 3)
    W2 = cfg.get("w2mode", 2)
    W2M = {1: (0x60, 0x60), 2: (0x60, 0), 3: (0x40, 0x40)}[W2]
    XT = 1 if PF == 4 else 0
    sCe = "s87"
    SP, sP, sPst, vP, vD = "s[88:91]", "s92", "s93", 3, 224
    sCls, sPn = "s99", "s98"
    def lines(txt): return [x.strip() for x in txt.strip().split("\n") if x.strip()]

    def dmaA(ldsoff, sreg):
        r = [f"s_add_u32 m0, {sLds}, {ldsoff}"]
        r += [f"buffer_load_dwordx4 v{vA+q}, {SA}, {sreg} offen offset:{q*1024} {cfg.get('pa1','')} lds" for q in range(4)]
        r += [f"s_add_u32 {sreg}, {sreg}, 128"]
        return r

    def dmaB(ldsoff, odd):
        srd, vb, sreg, sst = (SB1, vB1, sB1, sB1st) if odd else (SB0, vB0, sB0, sB0st)
        r = [f"s_add_u32 m0, {sLds}, {ldsoff}"]
        r += [f"buffer_load_dwordx4 v{vb+q}, {srd}, {sreg} offen offset:{q*1024} {cfg.get('pb1','')} lds" for q in range(4)]
        r += [f"s_add_u32 {sreg}, {sreg}, {sst}"]
        return r

    def burst(g):
        e(g[0]); e("s_nop 0")
        for x in g[1:]: e(x)

    def mix(main, fill):
        for i in range(len(main)):
            e(main[i])
            for x in fill[(i * len(fill)) // len(main):((i + 1) * len(fill)) // len(main)]: e(x)

    touch = f"buffer_load_dword a{vD}, v{vP}, {SP}, {sP} offen"
    tadv = f"s_add_u32 {sP}, {sP}, {sPst}"

    T0 = cfg.get("t0", 2)
    def pfsetup():
        e(f"""
        s_bfe_u32 {sCls}, s2, 0x20003
        s_mov_b32 s91, 0x20000
        v_lshlrev_b32 v{vP}, 7, v{vL}
        v_mov_b32 v{T+6}, 0x40000000
        s_cmp_eq_u32 {sI}, 0
        s_cbranch_scc1 L1_pfa
        s_lshl_b32 s5, {sJ}, 1
        s_xor_b32 {sCls}, {sCls}, s5
        s_mov_b32 s88, s46
        s_mov_b32 s89, s47
        s_mov_b32 s90, {3584*2048}
        s_mov_b32 {sPst}, 7168
        s_lshl_b32 s5, s2, 1
        s_add_u32 s5, s5, {sJ}
        s_mul_i32 {sP}, s5, {2*7168}
        s_cmp_eq_u32 {sJ}, 0
        s_mov_b32 {sPn}, {W2M[1]}
        s_cmov_b32 {sPn}, {W2M[0]}
        v_cmp_le_u32 vcc, {sPst}, v{vP}
        s_branch L1_pfd
        L1_pfa:
        s_mov_b32 {sPn}, 31
        s_cmp_eq_u32 {sJ}, 0
        s_cbranch_scc0 L1_pfx
        s_bitcmp0_b32 s2, 0
        s_cselect_b32 s88, s42, s44
        s_cselect_b32 s89, s43, s45
        s_mov_b32 s5, 7168
        s_cmov_b32 s5, 6144
        s_lshl_b32 s90, s5, 10
        s_lshl_b32 {sPst}, s5, 7
        s_lshr_b32 s6, s2, 1
        s_mul_i32 {sP}, s6, s5
        {'' if T0 else tadv}
        v_cmp_le_u32 vcc, s5, v{vP}
        s_branch L1_pfd
        L1_pfx:
        s_mov_b32 s88, s40
        s_mov_b32 s89, s41
        s_mov_b32 s90, {2048*2048}
        s_mov_b32 {sPst}, 256
        s_lshl_b32 {sP}, s2, 14
        s_add_u32 {sP}, {sP}, {128 if T0 else 384}
        v_lshrrev_b32 v{vP}, 1, v{vL}
        v_lshlrev_b32 v{vP}, 11, v{vP}
        v_and_b32 v{T+5}, 1, v{vL}
        v_cmp_lt_u32 vcc, 15, v{vL}
        v_lshl_add_u32 v{vP}, v{T+5}, 7, v{vP}
        L1_pfd:
        s_nop 1
        v_cndmask_b32 v{vP}, v{vP}, v{T+6}, vcc
        """)
    def tpro(n):
        e(f"""
        s_cmp_eq_u32 {sI}, 0
        s_cbranch_scc0 L1_tp{n}
        {touch}
        {tadv}
        L1_tp{n}:
        """)
    e(f"""
    s_cmp_ge_u32 s2, 256
    s_cbranch_scc1 L1_end
    """)
    stamp(e, 0, cfg)
    e(f"""
    s_load_dwordx4 s[40:43], s[0:1], 0
    s_load_dwordx4 s[44:47], s[0:1], 32
    s_load_dwordx2 s[48:49], s[0:1], 72
    s_load_dwordx2 s[94:95], s[0:1], 48
    s_load_dwordx2 s[96:97], s[0:1], 16
    v_lshrrev_b32 v3, 6, v0
    v_and_b32 v{vL}, 63, v0
    v_readfirstlane_b32 {sW}, v3
    v_lshrrev_b32 v{T}, 3, v{vL}
    v_lshrrev_b32 v{T+1}, 4, v{vL}
    v_and_b32 v{T+2}, 7, v{vL}
    v_xor_b32 v{T+3}, v{T+2}, v{T+1}
    v_lshlrev_b32 v{T+4}, 11, v{T}
    v_lshl_add_u32 v{vA}, v{T+3}, 4, v{T+4}
    v_xor_b32 v{vA+1}, 64, v{vA}
    v_add_u32 v{vA+2}, {2*16384 - 2048}, v{vA}
    v_add_u32 v{vA+1}, {16384 - 1024}, v{vA+1}
    v_add_u32 v{vA+3}, {2*16384 - 2048}, v{vA+1}
    s_and_b32 s5, s2, 1
    s_lshl_b32 s5, s5, 2
    s_bfe_u32 s6, s2, 0x20003
    s_add_u32 {sMT}, s5, s6
    s_bfe_u32 {sQD}, s2, 0x20005
    s_lshr_b32 {sI}, {sW}, 1
    s_and_b32 {sJ}, {sW}, 1
    s_lshl_b32 {sLds}, {sW}, 12
    s_xor_b32 s4, {sJ}, {sQD}
    s_lshl_b32 s4, s4, 5
    s_lshl_b32 s5, {sMT}, 8
    s_lshl_b32 s6, {sI}, 7
    s_add_u32 s5, s5, s6
    s_add_u32 s6, s5, s4
    s_lshl_b32 {sAlo}, s6, 11
    s_xor_b32 {sAhi}, {sAlo}, {64 << 11}
    s_mov_b32 s10, {2048*2048}
    s_mov_b32 s11, 0x20000
    s_waitcnt lgkmcnt(0)
    s_mov_b32 s8, s40
    s_mov_b32 s9, s41
    """)
    stamp(e, 1, cfg, 2)
    if PF == 4 and T0 == 1:
        pfsetup(); tpro(0)
    burst(dmaA(SPARE, sAlo))
    if PF == 4 and T0 == 2:
        pfsetup(); tpro(0)
    burst(dmaA(0, sAhi))
    e(f"""
    s_bfe_u32 s3, s2, 0x20001
    s_bfe_u32 {sTYPE}, s2, 0x10005
    s_lshr_b32 s5, s2, 6
    s_lshl_b32 s6, s3, 2
    s_add_u32 {sIDX}, s5, s6
    s_lshr_b32 {sSH}, {sIDX}, 1
    s_mul_i32 s50, {sSH}, 7
    s_and_b32 s51, {sIDX}, 1
    s_mul_i32 s51, s51, 3
    s_add_u32 s51, s51, s50
    s_add_u32 s50, s50, 6
    v_and_b32 v{T+3}, 1, v{T+1}
    v_lshlrev_b32 v{T+3}, 1, v{T+3}
    v_xor_b32 v{T+3}, v{T+3}, v{T+2}
    v_lshlrev_b32 v{T+3}, 4, v{T+3}
    v_xor_b32 v{T+4}, 64, v{T+3}
    s_cmp_eq_u32 {sTYPE}, 0
    s_cselect_b32 s52, {sIDX}, s51
    s_cselect_b32 s53, 16, 1
    s_cselect_b32 s16, s42, s44
    s_cselect_b32 s17, s43, s45
    s_mov_b32 s54, 7168
    s_cmov_b32 s54, 6144
    s_cmp_eq_u32 {sI}, 0
    s_cselect_b32 s4, s50, s52
    s_cselect_b32 s55, 7168, s54
    s_cselect_b32 s12, s44, s16
    s_cselect_b32 s13, s45, s17
    s_lshl_b32 s14, s55, 10
    s_mov_b32 s15, 0x20000
    s_lshl_b32 s7, {sJ}, 5
    s_lshl_b32 s4, s4, 7
    s_mul_i32 s6, s7, s55
    s_add_u32 {sB0}, s4, s6
    s_lshl_b32 {sB0st}, s55, 6
    """)
    def bvoff(vb, sp):
        e(f"""
        s_lshl_b32 s4, {sp}, 3
        s_sub_u32 s4, s4, 1024
        s_lshl_b32 s5, s4, 1
        v_mul_lo_u32 v{T+5}, v{T}, {sp}
        v_add_u32 v{vb}, v{T+5}, v{T+3}
        v_add3_u32 v{vb+1}, v{T+5}, v{T+4}, s4
        v_add_u32 v{vb+2}, s5, v{vb}
        v_add_u32 v{vb+3}, s5, v{vb+1}
        """)
    bvoff(vB0, "s55")
    burst(dmaB(16384, 0))
    e(f"""
    s_add_u32 s4, {sI}, 1
    s_mul_i32 s4, s4, s53
    s_add_u32 s4, s4, s52
    s_lshl_b32 s4, s4, 7
    s_mul_i32 s6, s7, s54
    s_add_u32 {sB1}, s4, s6
    s_lshl_b32 {sB1st}, s54, 6
    s_lshl_b32 s18, s54, 10
    s_mov_b32 s19, 0x20000
    """)
    bvoff(vB1, "s54")
    e(f"""
    v_lshlrev_b32 v{vL16}, 4, v{vL}
    v_and_b32 v{T}, 15, v{vL}
    v_lshrrev_b32 v{T+3}, 1, v{T}
    v_xor_b32 v{T+3}, v{T+3}, v{T+1}
    v_lshlrev_b32 v{T+3}, 4, v{T+3}
    v_lshl_add_u32 v{T+3}, v{T}, 7, v{T+3}
    s_lshl_b32 s4, {sI}, 13
    v_add_u32 v{rA}, s4, v{T+3}
    v_xor_b32 v{rA+1}, 64, v{rA}
    v_add_u32 v{rA+2}, 0x10000, v{rA}
    v_add_u32 v{rA+3}, 0x10000, v{rA+1}
    v_bfe_u32 v{T}, v{vL}, 2, 2
    v_lshl_add_u32 v{T+3}, v{T+1}, 3, v{T}
    v_lshlrev_b32 v{T+3}, 7, v{T+3}
    v_bfe_u32 v{T+4}, v{vL}, 3, 2
    s_lshl_b32 s4, {sJ}, 1
    v_xor_b32 v{T+4}, s4, v{T+4}
    v_lshl_add_u32 v{T+3}, v{T+4}, 5, v{T+3}
    v_and_b32 v{T+4}, 3, v{vL}
    v_lshl_add_u32 v{T+3}, v{T+4}, 3, v{T+3}
    v_add_u32 v{rB}, 16384, v{T+3}
    v_xor_b32 v{rB+1}, 32, v{rB}
    v_add_u32 v{rB+2}, 0x10000, v{rB}
    v_add_u32 v{rB+3}, 0x10000, v{rB+1}
    s_mov_b32 s20, s48
    s_mov_b32 s21, s49
    s_mov_b32 s22, {WS_SIZE}
    s_mov_b32 s23, 0x20000
    """)
    if PF == 4 and not T0: pfsetup()
    CPF = cfg.get("cpf", 1)
    SC = "s[4:7]"
    def codetouch(first, nlines, lab):
        return ["s_mov_b32 s4, s62", "s_mov_b32 s5, s63",
                f"s_mov_b32 s6, gm_text_end-{first}", "s_mov_b32 s7, 0x20000", "s_lshr_b32 s3, s2, 3", f"s_mul_i32 s3, s3, {nlines*128}",
                f"v_lshlrev_b32 v{T+7}, 7, v{vL}", [f"s_mov_b64 exec, {(1 << nlines) - 1}", f"buffer_load_dword a{vD}, v{T+7}, {SC}, s3 offen", "s_mov_b64 exec, -1"]]
    if CPF:
        e("s_getpc_b64 s[62:63]\nL1_cpa:\ns_add_u32 s62, s62, L1_loopQ-L1_cpa\ns_addc_u32 s63, s63, 0")
        e(f"s_cmp_eq_u32 {sW}, 3")
        e("s_cbranch_scc0 L1_cp0")
        for x in codetouch("L1_loopQ", 5, "L1_cpa"):
            for y in (x if isinstance(x, list) else [x]): e(y)
        e("L1_cp0:")
    stamp(e, 2, cfg, 2)
    mix(dmaB(32768 + 16384, 1) + dmaA(32768, sAlo), [f"v_mov_b32 v{ACC+i}, 0" for i in range(208)])
    if PF == 4: tpro(1)

    def rdA(ring, buf, half):
        r = []
        for mm in range(4):
            for ks in range(2):
                r.append(f"ds_read_b128 {ar(afr(buf, half*4+mm, ks))}, v{rA+ks+2*(ring>>1)} offset:{(ring&1)*32768 + mm*2048}")
        return r

    def rdB(ring, odd):
        r = []
        for li, L in enumerate((1, 2) if odd else (3, 0)):
            for t in range(2):
                for ks in range(2):
                    for hf in range(2):
                        r.append(f"ds_read_b64_tr_b16 {ar(bfr(L, t, ks)+hf*2, 2)}, v{rB+t+2*(ring>>1)} offset:{(ring&1)*32768 + li*8192 + ks*4096 + hf*512}")
        return r

    stamp(e, 3, cfg, 2)
    e(f"""
    v_add_u32 v{T}, 0x20000, v{rA}
    v_add_u32 v{T+1}, 0x20000, v{rA+1}
    s_waitcnt vmcnt(8)
    s_barrier
    """)
    stamp(e, 1, cfg); stamp(e, 4, cfg, 2)
    rd = rdB(0, 0) + [f"ds_read_b128 {ar(afr(0, mm, ks))}, v{T+ks} offset:{mm*2048}" for mm in range(4) for ks in range(2)] + rdA(0, 0, 1)
    for x in rd[:12]: e(x)
    mix(dmaB(2 * 32768 + 16384, 0) + dmaA(2 * 32768, sAhi), rd[12:])
    if LEAD == 3:
        burst(dmaB(3 * 32768 + 16384, 1))
        burst(dmaA(3 * 32768, sAlo))
    stamp(e, 5, cfg, 2)
    e(f"""
    s_mov_b32 {sIt}, 0
    """)
    if PF == 4:
        e(f"""
        s_cmp_eq_u32 {sI}, 0
        s_cbranch_scc0 L1_tp2
        {touch}
        {tadv}
        s_waitcnt vmcnt({8*(LEAD-1) + 2})
        s_branch L1_tp3
        L1_tp2:
        """)
    e(f"""
    s_waitcnt vmcnt({8*(LEAD-1)})
    L1_tp3:
    s_waitcnt lgkmcnt(0)
    s_barrier
    """)
    stamp(e, 6, cfg); stamp(e, 6, cfg, 2)
    e(f"""
    s_cmp_eq_u32 {sTYPE}, 0
    s_cbranch_scc0 L1_loopH
    """)

    def body(typ, last, lab):
        for st in range(2):
            mf = []
            for L, nm in ((3, 2), (0, 8), (1, 8), (2, 8)):
                for t in range(2):
                    for m in range(nm):
                        for ks in range(2):
                            d = vr(acc(L, t, m)); w = ar(bfr(L, t, ks)); x = ar(afr(st, m, ks))
                            mf.append(mfma(d, x, w) if (typ == 0 and L in (1, 2)) else mfma(d, w, x))
            it = []
            for hp in range(2):
                per = 2 * st + hp
                ring = (per + 1) & 3
                base = hp * 52
                odd = 1 - hp
                dpos = [base + 3 + 6 * d for d in range(8)]
                if cfg.get("stamps") and per == 0: it.append((base, "s_memrealtime s[100:101]"))
                if cfg.get("stamps") and per == 1: it.append((base, [f"s_mov_b32 m0, {sIt}", f"v_writelane_b32 v45, s100, m0"]))
                if cfg.get("stamps") and per == 3 and last: it.append((base, f"v_accvgpr_write_b32 a225, v45"))
                dring = (ring + LEAD) & 3
                dodd = dring & 1
                if not last or per + LEAD <= 2:
                    gB = dmaB(dring * 32768 + 16384, dodd)
                    gA = dmaA(dring * 32768, sAlo if dodd else sAhi)
                    for gi, g in enumerate((gB, gA)):
                        if last and gi == 1: continue
                        it.append((dpos[gi * 4] - 1, g[0]))
                        for q in range(4): it.append((dpos[gi * 4 + q], g[1 + q]))
                        it.append((dpos[gi * 4 + 3] + 1, g[5]))
                if not last and PF == 4:
                    pp = base + cfg.get("pfpos", 48)
                    it.append((pp - 1, f"s_cmp_eq_u32 {sCe}, {per}"))
                    it.append((pp, [f"s_cbranch_scc0 {lab}_nt{per}", touch, tadv, f"{lab}_nt{per}:"]))
                    if per == 0:
                        it.append((base + 1, [f"s_bitcmp1_b32 {sPn}, {sIt}", f"s_cselect_b32 {sCe}, {sCls}, 7"]))
                GP = 0
                if last and per == 0 and PF == 4:
                    p0 = base + 46
                    if W2 == 2:
                        it.append((p0, [f"s_cmp_eq_u32 {sW}, 3", f"s_cbranch_scc0 {lab}_lt", touch, tadv, touch, f"{lab}_lt:"]))
                    if W2 == 3:
                        it.append((p0, [f"s_cmp_eq_u32 {sI}, 1", f"s_cbranch_scc0 {lab}_lt", touch, f"{lab}_lt:"]))
                    it.append((p0 + 1, ["s_mov_b32 s88, s96", "s_mov_b32 s89, s97"]))
                    it.append((p0 + 2, [f"s_mov_b32 s90, {1024*2048}", f"s_lshr_b32 {sP}, s4, 1"]))
                    it.append((p0 + 3, f"v_lshlrev_b32 v{vP}, 7, v{vL}"))
                    it.append((p0 + 4, ["s_mov_b64 exec, 0xffff", touch, "s_mov_b64 exec, -1"]))
                if last and per == 1 and CPF:
                    blk = [f"s_cmp_eq_u32 {sW}, 3", f"s_cbranch_scc0 {lab}_cp1"]
                    for x in codetouch("L1_loopQ", 12, f"{lab}_cpb"): blk += x if isinstance(x, list) else [x]
                    it.append((base + 46, blk + [f"{lab}_cp1:"]))
                if last and per == GP:
                    ex = ["s_mov_b32 s56, s94", "s_mov_b32 s57, s95", "s_mov_b32 s58, 2048", "s_mov_b32 s59, 0x20000",
                          f"v_and_b32 v{T+5}, 31, v{vL}", f"v_lshlrev_b32 v{T+5}, 4, v{T+5}", f"v_lshrrev_b32 v{T+6}, 5, v{vL}",
                          f"v_lshl_add_u32 v{T+6}, v{T+6}, 11, v{T+5}", "s_lshl_b32 s4, s2, 2", f"s_add_u32 s4, s4, {sW}", "s_lshl_b32 s4, s4, 12"]
                    for i, x in enumerate(ex): it.append((base + i, x))
                    for u in range(4):
                        it.append((base + 23 + 3 * u, f"buffer_load_dwordx4 {ar(GX+u*4)}, v{T+6}, {SA}, s4 offen offset:{u*512}"))
                        it.append((base + 35 + 3 * u, f"buffer_load_dwordx4 {ar(GX+16+u*4)}, v{T+5}, s[56:59], 0 offen offset:{u*512}"))
                rb = rdB(ring, odd); ra = rdA(ring, 1 - st, 0 if odd else 1)
                if last and per == 3: rb, ra = [], []
                if last and per == 2: ra = []
                rd = rb[:4]
                rest_b = rb[4:]
                k = 0
                for i in range(len(ra)):
                    rd.append(ra[i])
                    n = (len(rest_b) * (i + 1)) // len(ra)
                    rd += rest_b[k:n]; k = n
                rd += rest_b[k:]
                if rd:
                    pos = spread(len(rd), base, base + 44, avoid=dpos)
                    for p, x in zip(pos, rd): it.append((p, x))
                if hp == 0:
                    issued = sum(1 for p in pos if p <= 39)
                    it.append((39, f"s_waitcnt lgkmcnt({min(15, issued - 4)})"))
                if not last:
                    w = [f"s_waitcnt vmcnt({8*(LEAD-1)}) lgkmcnt(0)", "s_barrier"]
                else:
                    n0 = (8 if LEAD == 3 else 4) + 8 + XT
                    n1 = 8 + XT
                    w = [[f"s_waitcnt vmcnt({n0}) lgkmcnt(0)", "s_barrier"], [f"s_waitcnt vmcnt({n1}) lgkmcnt(0)", "s_barrier"],
                         ["s_waitcnt lgkmcnt(0)"], []][per]
                if per == 3 and not last:
                    it.append((base + 43, f"s_add_u32 {sIt}, {sIt}, 1"))
                    it.append((base + 50, f"s_cmp_lt_u32 {sIt}, 7"))
                    w.append(f"s_cbranch_scc1 {lab}")
                it.append((base + 51, w))
            for x in place(mf, it): e(x)

    def loop(typ):
        lab = "L1_loopH" if typ else "L1_loopQ"
        e(".p2align 3")
        e(f"{lab}:")
        body(typ, False, lab)
        body(typ, True, lab)

    def blockbase(m, dst, kbs, extra):
        e(f"""
        s_xor_b32 {dst}, s60, {m}
        s_add_u32 {dst}, {dst}, s61
        s_mul_i32 {dst}, {dst}, {kbs*1024}
        s_add_u32 {dst}, {dst}, {extra}
        """)

    tmpi = [0]
    def tq():
        r = T + 4 * (tmpi[0] % 4); tmpi[0] += 1
        return r

    def relu_store(a0, a1, soff, imm):
        r = tq()
        e(f"""
        v_cvt_pk_bf16_f32 v{r}, v{a0}, v{a0+1}
        v_cvt_pk_bf16_f32 v{r+1}, v{a0+2}, v{a0+3}
        v_cvt_pk_bf16_f32 v{r+2}, v{a1}, v{a1+1}
        v_cvt_pk_bf16_f32 v{r+3}, v{a1+2}, v{a1+3}
        v_pk_max_i16 v{r}, v{r}, 0
        v_pk_max_i16 v{r+1}, v{r+1}, 0
        v_pk_max_i16 v{r+2}, v{r+2}, 0
        v_pk_max_i16 v{r+3}, v{r+3}, 0
        buffer_store_dwordx4 {vr(r)}, v{vL16}, {SW}, {soff} offen offset:{imm} {ST}
        """)

    def epi_common():
        stamp(e, 2, cfg)
        e(f"""
        s_lshl_b32 s60, {sQD}, 1
        s_lshl_b32 s61, {sMT}, 4
        s_lshl_b32 s4, {sI}, 3
        s_add_u32 s61, s61, s4
        s_lshl_b32 s62, s50, 1
        s_add_u32 s62, s62, {sJ}
        s_lshl_b32 s62, s62, 10
        s_lshl_b32 s63, s51, 1
        s_add_u32 s63, s63, {sJ}
        s_lshl_b32 s63, s63, 10
        """)
        for m in range(2):
            blockbase(m, "s4", A2_KB, "s62")
            relu_store(acc(3, 0, m), acc(3, 1, m), "s4", 0)

    def phi4(a, P):
        e(f"""
        v_pk_mul_f32 {vr(P,2)}, {vr(a,2)}, s[64:65]
        v_pk_mul_f32 {vr(P+2,2)}, {vr(a+2,2)}, s[64:65]
        v_exp_f32_e64 v{P}, v{P} clamp
        v_max_f32 v{a}, s66, v{a}
        v_exp_f32_e64 v{P+1}, v{P+1} clamp
        v_max_f32 v{a+1}, s66, v{a+1}
        v_exp_f32_e64 v{P+2}, v{P+2} clamp
        v_max_f32 v{a+2}, s66, v{a+2}
        v_exp_f32_e64 v{P+3}, v{P+3} clamp
        v_max_f32 v{a+3}, s66, v{a+3}
        v_pk_add_f32 {vr(a,2)}, {vr(a,2)}, {vr(P,2)}
        v_pk_add_f32 {vr(a+2,2)}, {vr(a+2,2)}, {vr(P+2,2)}
        """)

    def pack8(dst, a0, a1):
        e(f"""
        v_cvt_pk_bf16_f32 v{dst}, v{a0}, v{a0+1}
        v_cvt_pk_bf16_f32 v{dst+1}, v{a0+2}, v{a0+3}
        v_cvt_pk_bf16_f32 v{dst+2}, v{a1}, v{a1+1}
        v_cvt_pk_bf16_f32 v{dst+3}, v{a1+2}, v{a1+3}
        """)

    loop(0)
    epi_common()
    e(f"""
    s_mov_b32 s64, {LOG2E}
    s_mov_b32 s65, {LOG2E}
    s_mov_b32 s66, {EPS}
    s_lshl_b32 s67, {sIDX}, 1
    s_add_u32 s67, s67, {sJ}
    s_lshl_b32 s5, s67, 10
    s_add_u32 s5, s5, {WS_PQ}
    """)
    P = T + 16
    for m in range(8):
        phi4(acc(0, 0, m), P); phi4(acc(0, 1, m), P + 4)
        blockbase(m, "s4", 32, "s5")
        r = tq()
        pack8(r, acc(0, 0, m), acc(0, 1, m))
        e(f"buffer_store_dwordx4 {vr(r)}, v{vL16}, {SW}, s4 offen {ST}")
    KV = acc(0, 0, 0)
    Z = KV + 16; ONES = KV + 24
    for i in range(4): e(f"v_mov_b32 v{ONES+i}, 0x3f803f80")
    for u in range(4):
        for t in range(2):
            phi4(acc(1, t, 2 * u), P); phi4(acc(1, t, 2 * u + 1), P + 4)
            pack8(acc(1, t, 2 * u), acc(1, t, 2 * u), acc(1, t, 2 * u + 1))
        for t in range(2):
            pack8(acc(2, t, 2 * u), acc(2, t, 2 * u), acc(2, t, 2 * u + 1))
        e("s_nop 1")
        for td in range(2):
            for te in range(2):
                d = vr(KV + (td * 2 + te) * 4)
                e(mfma(d, vr(acc(1, td, 2 * u)), vr(acc(2, te, 2 * u)), None if u else "0"))
            d = vr(Z + td * 4)
            e(mfma(d, vr(acc(1, td, 2 * u)), vr(ONES), None if u else "0"))
    e(f"""
    s_mul_i32 s4, {sJ}, 6144
    s_add_u32 s4, s4, {SPARE}
    v_add_u32 v{T}, s4, v{vL16}
    s_nop 7
    s_cmp_eq_u32 {sI}, 0
    s_cbranch_scc1 L1_q_rd
    """)
    for i in range(6): e(f"ds_write_b128 v{T}, {vr(KV+i*4)} offset:{i*1024}")
    e(f"""
    s_waitcnt vmcnt({10 + XT}) lgkmcnt(0)
    s_barrier
    s_branch L1_gate
    L1_q_rd:
    s_barrier
    """)
    R = KV + 32
    for i in range(6): e(f"ds_read_b128 {vr(R+i*4)}, v{T} offset:{i*1024}")
    e(f"""
    s_lshl_b32 s4, s67, 3
    s_add_u32 s4, s4, {sMT}
    s_lshl_b32 s4, s4, 12
    s_add_u32 s4, s4, {WS_KVP}
    s_lshl_b32 s5, s67, 10
    s_lshl_b32 s6, {sMT}, 6
    s_add_u32 s5, s5, s6
    s_add_u32 s5, s5, {WS_ZP}
    v_and_b32 v{T+1}, 48, v{vL}
    s_waitcnt lgkmcnt(0)
    """)
    for i in range(12): e(f"v_pk_add_f32 {vr(KV+i*2,2)}, {vr(KV+i*2,2)}, {vr(R+i*2,2)}")
    for i in range(4): e(f"buffer_store_dwordx4 {vr(KV+i*4)}, v{vL16}, {SW}, s4 offen offset:{i*1024} {ST}")
    e(f"""
    s_mov_b64 s[6:7], exec
    s_mov_b32 exec_lo, 0x00010001
    s_mov_b32 exec_hi, 0x00010001
    buffer_store_dwordx4 {vr(Z)}, v{T+1}, {SW}, s5 offen {ST}
    buffer_store_dwordx4 {vr(Z+4)}, v{T+1}, {SW}, s5 offen offset:512 {ST}
    s_mov_b64 exec, s[6:7]
    s_waitcnt vmcnt({16 + XT})
    s_branch L1_gate
    """)
    loop(1)
    epi_common()
    for m in range(8):
        blockbase(m, "s4", A2_KB, "s63")
        relu_store(acc(0, 0, m), acc(0, 1, m), "s4", 0)
        relu_store(acc(1, 0, m), acc(1, 1, m), "s4", 2048)
        e("s_add_u32 s5, s4, 4096")
        relu_store(acc(2, 0, m), acc(2, 1, m), "s5", 0)
    G0 = ACC + 64
    e(f"s_waitcnt vmcnt({26 + XT})")
    e("L1_gate:")
    stamp(e, 3, cfg)
    for i in range(32): e(f"v_accvgpr_read_b32 v{G0+i}, a{GX+i}")
    e(f"v_mov_b32 v{G0+32}, 0")
    e(f"v_mov_b32 v{G0+33}, 0")
    for i in range(16): e(f"v_dot2c_f32_bf16 v{G0+32+(i&1)}, v{G0+i}, v{G0+16+i}")
    g = G0 + 32
    e(f"""
    s_nop 2
    v_add_f32 v{g}, v{g}, v{g+1}
    s_nop 1
    v_add_f32_dpp v{g}, v{g}, v{g} quad_perm:[1,0,3,2] row_mask:0xf bank_mask:0xf
    s_nop 1
    v_add_f32_dpp v{g}, v{g}, v{g} quad_perm:[2,3,0,1] row_mask:0xf bank_mask:0xf
    s_nop 1
    v_add_f32_dpp v{g}, v{g}, v{g} row_half_mirror row_mask:0xf bank_mask:0xf
    s_nop 1
    v_add_f32_dpp v{g}, v{g}, v{g} row_mirror row_mask:0xf bank_mask:0xf
    s_nop 1
    v_add_f32_dpp v{g}, v{g}, v{g} row_bcast:15 row_mask:0xa bank_mask:0xf
    v_mul_f32 v{g}, 0xbfb8aa3b, v{g}
    v_exp_f32 v{g}, v{g}
    v_lshrrev_b32 v{g+1}, 5, v{vL}
    v_add_f32 v{g}, 1.0, v{g}
    v_rcp_f32 v{g}, v{g}
    v_lshlrev_b32 v{g+1}, 2, v{g+1}
    s_lshl_b32 s4, s2, 2
    s_add_u32 s4, s4, {sW}
    s_lshl_b32 s5, s4, 3
    s_add_u32 s5, s5, {WS_G}
    s_mov_b32 exec_lo, 0x80000000
    s_mov_b32 exec_hi, 0x80000000
    buffer_store_dword v{g}, v{g+1}, {SW}, s5 offen {ST}
    s_mov_b64 exec, 15
    v_mov_b32 v{g+2}, 0
    v_lshlrev_b32 v{g+3}, 2, v{vL}
    s_lshl_b32 s5, s2, 7
    s_lshl_b32 s6, {sW}, 4
    s_add_u32 s5, s5, s6
    s_add_u32 s6, s5, {WS_FLAG}
    s_add_u32 s5, s5, {WS_CNT}
    buffer_store_dword v{g+2}, v{g+3}, {SW}, s6 offen {ST}
    buffer_store_dword v{g+2}, v{g+3}, {SW}, s5 offen {ST}
    s_mov_b64 exec, -1
    """)
    if cfg.get("stamps"):
        stamp(e, 4, cfg)
        e("s_waitcnt vmcnt(0)")
        stamp(e, 5, cfg)
        stamp_flush(e, cfg, 8, 0, SW, "L1_st")
        e(f"""
        v_lshlrev_b32 v1, 2, v0
        v_cmp_gt_u32 vcc, 8, v0
        s_and_saveexec_b64 s[68:69], vcc
        s_cbranch_execz L1_st2
        buffer_store_dword a225, v1, {SW}, s3 offen offset:32
        L1_st2:
        """)
    e("L1_end:")
    e("s_endpgm")
    return K, e.text(), dict(vgpr=512, accum=256, sgpr=102)


class VQ:
    def __init__(self, init=()):
        self.q = list(init)
    def op(self, tag): self.q.append(tag)
    def need(self, *tags):
        last = max((i for i, t in enumerate(self.q) if t in tags), default=-1)
        n = len(self.q) - 1 - last
        self.q = self.q[last + 1:]
        assert n <= 63
        return n


class Gaps:
    def __init__(self, n):
        self.n = n; self.load = [0] * n; self.items = []
    @staticmethod
    def w(x):
        if isinstance(x, list): return sum(Gaps.w(y) for y in x)
        t = x[0] if isinstance(x, tuple) else x
        if t.endswith(":"): return 0
        return 2 if t.startswith(("buffer", "v_exp", "v_rcp", "v_mfma")) else 1
    def put(self, p, x):
        self.items.append((p, x)); self.load[p] += self.w(x)
    def seq(self, xs, lo, hi, cap=2):
        pos = []; p = lo
        for i, x in enumerate(xs):
            p = max(p, lo + (i * (hi - lo)) // len(xs))
            q = p
            while q < hi and self.load[q] + self.w(x) > cap: q += 1
            if q >= hi:
                q = min(range(p, hi), key=lambda z: self.load[z])
            self.put(q, x); pos.append(q); p = q
        return pos


def gen_k2(cfg):
    e = Em()
    K = "gm2_kernel"
    SW, SB, SO, SB2 = "s[8:11]", "s[12:15]", "s[16:19]", "s[20:23]"
    sW, sRB, sNB, sKQ, sI, sJ = "s24", "s25", "s26", "s27", "s28", "s29"
    sAr = ["s30", "s31"]; sAo = "s32"; sBl = ["s33", "s34"]; sBo = "s35"
    sLa, sLb = "s36", "s37"
    sCol, sMT, sHD, sM16, sCntP, sCntC, sXo, sT = "s50", "s51", "s52", "s53", "s54", "s55", "s56", "s57"
    sXi = [None, "s58", "s59", "s60"]; sFl = "s61"
    vL, vL16, vA2 = 1, 2, 3
    vB = 4
    rA, rB = 6, 9
    vOne, vFa = 15, 16
    vG = 20
    vFl = 44
    T = 24
    ACC = 48
    def acc(R, L, t, m): return ACC + (((R * 2 + L) * 2 + t) * 4 + m) * 4
    AA = ACC + 128
    def acca(t, m): return AA + (t * 4 + m) * 4
    def afr(buf, R, m, ks): return buf * 64 + ((R * 4 + m) * 2 + ks) * 4
    def bfr(L, t, ks): return 128 + ((L * 2 + t) * 2 + ks) * 4
    SLOT, NR = 24576, 6
    SPARE = SLOT * NR
    NS1, NS2 = 14, 16
    NP1 = 2 * NS1; NP = NP1 + NS2

    e(f"""
    s_cmp_ge_u32 s2, 256
    s_cbranch_scc1 L2_end
    """)
    stamp(e, 0, cfg)
    e(f"""
    s_load_dwordx2 s[46:47], s[0:1], 72
    s_load_dwordx2 s[42:43], s[0:1], 40
    s_load_dwordx2 s[40:41], s[0:1], 16
    s_load_dwordx2 s[44:45], s[0:1], 56
    v_lshrrev_b32 v{T}, 6, v0
    v_and_b32 v{vL}, 63, v0
    v_readfirstlane_b32 {sW}, v{T}
    v_lshlrev_b32 v{vL16}, 4, v{vL}
    v_add_u32 v{vA2}, {A2_KB*1024 - 2048}, v{vL16}
    s_mov_b32 s63, s2
    """)
    XM = {0: None, 1: [3, 4, 5, 0, 1, 2, 6, 7], 2: [0, 3, 1, 4, 5, 2, 6, 7], 3: [3, 0, 1, 4, 5, 2, 6, 7]}[cfg.get("xmap", 0)]
    if XM:
        e("s_and_b32 s2, s63, 0xc0")
        for lb, pb in enumerate(XM[:6]):
            e(f"s_bfe_u32 s3, s63, {0x10000 | pb}\ns_lshl_b32 s3, s3, {lb}\ns_or_b32 s2, s2, s3")
    e(f"""
    s_and_b32 {sKQ}, s2, 3
    s_and_b32 s3, s2, 4
    s_bfe_u32 s4, s2, 0x20003
    s_add_u32 {sRB}, s3, s4
    s_lshr_b32 {sNB}, s2, 5
    s_lshr_b32 {sI}, {sW}, 1
    s_and_b32 {sJ}, {sW}, 1
    s_lshl_b32 {sLa}, {sW}, 12
    s_lshl_b32 {sLb}, {sW}, 11
    s_lshl_b32 s3, {sRB}, 4
    s_lshl_b32 s4, {sW}, 1
    s_add_u32 s3, s3, s4
    s_lshl_b32 s4, {sKQ}, 2
    s_and_b32 s4, s4, 8
    s_add_u32 s5, s3, s4
    s_xor_b32 s6, s5, 8
    s_mul_i32 s5, s5, {A2_KB*1024}
    s_mul_i32 s6, s6, {A2_KB*1024}
    s_mul_i32 s7, {sKQ}, {28*1024}
    s_add_u32 {sAo}, s5, {112*1024}
    s_add_u32 {sAr[0]}, s5, s7
    s_add_u32 {sAr[1]}, s6, s7
    s_mov_b32 s10, {WS_SIZE}
    s_mov_b32 s11, 0x20000
    s_waitcnt lgkmcnt(0)
    s_mov_b32 s8, s46
    s_mov_b32 s9, s47
    """)
    stamp(e, 1, cfg, 2)

    def grpA(u, sreg, fl=""):
        r = [f"s_add_u32 m0, {sLa}, {(u % NR) * SLOT}"]
        r += [(f"buffer_load_dwordx4 v{vL16 if q < 2 else vA2}, {SW}, {sreg} offen offset:{q*1024} {fl}lds", ("u", u)) for q in range(4)]
        return r + [f"s_add_u32 {sreg}, {sreg}, 2048"]

    def grpB(u, srd, sreg):
        r = [f"s_add_u32 m0, {sLb}, {(u % NR) * SLOT + 16384}"]
        r += [(f"buffer_load_dwordx4 v{vB+q}, {srd}, {sreg} offen offset:{q*1024} lds", ("u", u)) for q in range(2)]
        return r + [f"s_add_u32 {sreg}, {sreg}, {64*2048}"]

    def slot(u):
        if u == 0: return grpA(0, sAr[0])
        if u == 1: return grpA(1, sAr[1]) + grpB(1, SB, sBl[0])
        if u == NP1: return grpB(u, SB, sBl[1])
        if u > NP1: return grpB(u, SB2, sBo) + grpA(u, sAo, "sc1 ")
        return grpB(u, SB, sBl[1 - (u & 1)]) + grpA(u, sAr[u & 1])

    def reads(u):
        st, off = (u % NR) // 2, ((u % NR) & 1) * SLOT
        if u <= NP1:
            R = u & 1; buf = (u // 2) & 1; L = 1 - (u & 1)
            hasA, hasB = u < NP1, u > 0
        else:
            s2 = u - NP1 - 1
            R = 0; buf = (NS1 + s2) & 1; L = s2 & 1
            hasA = hasB = True
        ra = [f"ds_read_b128 {ar(afr(buf, R, m, ks))}, v{rA+st} offset:{off + m*2048 + ks*1024}" for m in range(4) for ks in range(2)] if hasA else []
        rb = [f"ds_read_b64_tr_b16 {ar(bfr(L, t, ks)+hf*2, 2)}, v{rB+t+2*st} offset:{off + ks*4096 + hf*2048}"
              for t in range(2) for ks in range(2) for hf in range(2)] if hasB else []
        out = []
        for i in range(8): out += rb[i:i+1] + ra[i:i+1]
        return out

    vq = VQ()
    born = {}; cur = [-1]
    AGE = {"cnt": 2, "pf": cfg.get("agepf", 1), "o": 2, "opq": 2, "ost": 3, "xst": cfg.get("agex", 2), ("rx", 1): cfg.get("agerx", 2), ("rx", 2): cfg.get("agerx", 2), ("rx", 3): cfg.get("agerx", 2)}
    def emit(x):
        if isinstance(x, list):
            for y in x: emit(y)
            return
        tag = None
        if isinstance(x, tuple): x, tag = x
        e(x)
        if x.startswith("buffer"):
            assert tag is not None, x
            vq.op(tag); born[tag] = cur[0]
    def burst(g):
        for x in g:
            emit(x)
            if isinstance(x, str) and " m0," in x: e("s_nop 0")

    burst(slot(0))
    burst(slot(1)[:6])
    e(f"""
    s_lshl_b32 s3, {sNB}, 1
    s_and_b32 s4, {sKQ}, 1
    s_add_u32 s3, s3, s4
    s_lshl_b32 {sCol}, s3, 7
    s_lshl_b32 s4, {sW}, 15
    s_add_u32 {sBo}, s4, {sCol}
    s_mul_i32 s5, {sKQ}, {896*2048}
    s_add_u32 {sBl[1]}, {sBo}, s5
    s_xor_b32 {sBl[0]}, {sBl[1]}, 128
    v_lshrrev_b32 v{T}, 3, v{vL}
    v_lshrrev_b32 v{T+1}, 4, v{vL}
    v_and_b32 v{T+2}, 7, v{vL}
    v_lshlrev_b32 v{T+3}, 1, v{T+1}
    v_xor_b32 v{T+3}, v{T+3}, v{T+2}
    v_lshlrev_b32 v{T+3}, 4, v{T+3}
    v_lshl_add_u32 v{vB}, v{T}, 11, v{T+3}
    v_add_u32 v{vB+1}, {16384-1024}, v{vB}
    s_mov_b32 s12, s42
    s_mov_b32 s13, s43
    s_mov_b32 s14, {3584*2048}
    s_mov_b32 s15, 0x20000
    """)
    burst(slot(1)[6:])
    burst(slot(2))
    stamp(e, 2, cfg, 2)
    vZa, vGa = T + 8, T + 9
    e(f"""
    s_mov_b32 s16, s44
    s_mov_b32 s17, s45
    s_mov_b32 s18, {2048*2048}
    s_mov_b32 s19, 0x20000
    s_mov_b32 s20, s40
    s_mov_b32 s21, s41
    s_mov_b32 s22, {1024*2048}
    s_mov_b32 s23, 0x20000
    s_lshl_b32 s4, {sI}, 13
    v_add_u32 v{rA}, s4, v{vL16}
    v_add_u32 v{rA+1}, {2*SLOT}, v{rA}
    v_add_u32 v{rA+2}, {4*SLOT}, v{rA}
    v_lshlrev_b32 v{vZa}, 6, v{T+2}
    v_lshl_add_u32 v{vZa}, v{T+1}, 4, v{vZa}
    v_lshrrev_b32 v{T+3}, 2, v{vL}
    v_lshlrev_b32 v{T+3}, 7, v{T+3}
    v_bfe_u32 v{T+4}, v{vL}, 3, 2
    s_lshl_b32 s4, {sJ}, 1
    v_xor_b32 v{T+4}, s4, v{T+4}
    v_lshl_add_u32 v{T+3}, v{T+4}, 5, v{T+3}
    v_and_b32 v{T+4}, 3, v{vL}
    v_lshl_add_u32 v{T+3}, v{T+4}, 3, v{T+3}
    v_add_u32 v{rB}, 16384, v{T+3}
    v_xor_b32 v{rB+1}, 32, v{rB}
    v_add_u32 v{rB+2}, {2*SLOT}, v{rB}
    v_add_u32 v{rB+3}, {2*SLOT}, v{rB+1}
    v_add_u32 v{rB+4}, {4*SLOT}, v{rB}
    v_add_u32 v{rB+5}, {4*SLOT}, v{rB+1}
    v_mov_b32 v{vOne}, 1
    v_xor_b32 v{vFa}, s2, v{T+4}
    v_lshlrev_b32 v{vFa}, 7, v{vFa}
    v_lshl_add_u32 v{vFa}, v{T+4}, 2, v{vFa}
    v_and_b32 v{vGa}, 15, v{vL}
    v_lshlrev_b32 v{vGa}, 2, v{vGa}
    s_lshr_b32 {sMT}, s63, 5
    s_and_b32 s3, s63, 7
    s_lshl_b32 s3, s3, 2
    s_bfe_u32 s4, s63, 0x20003
    s_add_u32 {sHD}, s3, s4
    s_lshl_b32 {sM16}, {sMT}, 4
    s_lshl_b32 s5, {sW}, 2
    s_add_u32 {sM16}, {sM16}, s5
    s_lshl_b32 {sCntP}, {sMT}, 7
    s_add_u32 {sCntP}, {sCntP}, {WS_CNT}
    s_lshl_b32 {sCntC}, {sRB}, 7
    s_add_u32 {sCntC}, {sCntC}, {WS_CNT}
    s_lshl_b32 s4, {sW}, 4
    s_add_u32 {sFl}, s4, {WS_FLAG}
    s_lshl_b32 s3, s2, 16
    s_add_u32 s4, {sLa}, {WS_XCH}
    s_add_u32 {sXo}, s3, s4
    """)
    for d in (1, 2, 3):
        e(f"s_xor_b32 s5, s3, {d << 16}")
        e(f"s_add_u32 s5, s5, s4")
        e(f"s_add_u32 {sXi[d]}, s5, {d << 14}")
    stamp(e, 3, cfg, 2)
    e(f"s_waitcnt vmcnt({vq.need(('u', 1))})")
    e("s_barrier")
    stamp(e, 1, cfg); stamp(e, 4, cfg, 2)
    rd = reads(1) + reads(0)
    for x in rd[:10]: e(x)
    g3 = slot(3)
    for i in range(len(g3)):
        emit(g3[i])
        for x in rd[10 + (i * 14) // len(g3):10 + ((i + 1) * 14) // len(g3)]: e(x)
    stamp(e, 5, cfg, 2)
    e(f"s_waitcnt vmcnt({vq.need(('u', 2))}) lgkmcnt(0)")
    e("s_barrier")
    stamp(e, 2, cfg); stamp(e, 6, cfg, 2); stamp(e, 7, cfg, 2)

    KP, ZPv, PQv = AA, 208, 216
    oloads = [f"s_lshl_b32 {sT}, {sHD}, 15", f"s_lshl_b32 s5, {sW}, 10", f"s_add_u32 {sT}, {sT}, s5", f"s_add_u32 {sT}, {sT}, {WS_KVP}"]
    for p in range(8):
        oloads += [(f"buffer_load_dwordx4 {vr(KP+p*4)}, v{vL16}, {SW}, {sT} offen", "o")] + ([f"s_add_u32 {sT}, {sT}, 4096"] if p < 7 else [])
    oloads += [f"s_lshl_b32 {sT}, {sHD}, 10", f"s_add_u32 {sT}, {sT}, {WS_ZP}",
               (f"buffer_load_dwordx4 {vr(ZPv)}, v{vZa}, {SW}, {sT} offen", "o"),
               (f"buffer_load_dwordx4 {vr(ZPv+4)}, v{vZa}, {SW}, {sT} offen offset:512", "o"),
               f"s_lshl_b32 {sT}, {sM16}, 5", f"s_add_u32 {sT}, {sT}, {sHD}", f"s_lshl_b32 {sT}, {sT}, 10", f"s_add_u32 {sT}, {sT}, {WS_PQ}"]
    for m in range(4):
        oloads += [(f"buffer_load_dwordx4 {vr(PQv+m*4)}, v{vL16}, {SW}, {sT} offen", "opq")] + ([f"s_add_u32 {sT}, {sT}, 32768"] if m < 3 else [])
    o1 = []
    for stp in (4, 2, 1):
        for p in range(stp):
            for h in range(4):
                o1.append(f"v_add_f32 v{KP+p*4+h}, v{KP+p*4+h}, v{KP+(p+stp)*4+h}")
    o1 += [f"v_cvt_pk_bf16_f32 v{KP}, v{KP}, v{KP+1}", f"v_cvt_pk_bf16_f32 v{KP+1}, v{KP+2}, v{KP+3}",
           f"s_lshl_b32 s4, {sJ}, 10", f"s_lshl_b32 s5, {sI}, 3", "s_add_u32 s4, s4, s5", f"s_add_u32 s4, s4, {SPARE}",
           f"v_add_u32 v{T}, s4, v{vL16}", f"v_add_u32 v{T+1}, {SPARE}, v{vL16}", f"ds_write_b64 v{T}, {vr(KP,2)}"]
    o2 = [f"ds_read_b128 {vr(KP+4)}, v{T+1}", f"ds_read_b128 {vr(KP+8)}, v{T+1} offset:1024"]
    for dpp in ("quad_perm:[1,0,3,2]", "quad_perm:[2,3,0,1]", "row_half_mirror"):
        for i in range(8):
            o2.append(f"v_add_f32_dpp v{ZPv+i}, v{ZPv+i}, v{ZPv+i} {dpp} row_mask:0xf bank_mask:0xf")
    o2 += [f"v_cvt_pk_bf16_f32 v{ZPv+i}, v{ZPv+2*i}, v{ZPv+2*i+1}" for i in range(4)]
    sT2 = "s62"
    o2 += [f"s_mul_i32 {sT2}, {sM16}, {A2_KB*1024}", f"s_add_u32 s5, {sHD}, 112", "s_lshl_b32 s5, s5, 10", f"s_add_u32 {sT2}, {sT2}, s5"]
    def oreg(m, k):
        return [232, KP + 12][m & 1] + k * 4
    def o3m(m):
        return [mfma(vr(oreg(m, 0)), vr(ZPv), vr(PQv + m * 4), "0"), mfma(vr(oreg(m, 1)), vr(KP + 4), vr(PQv + m * 4), "0"),
                mfma(vr(oreg(m, 2)), vr(KP + 8), vr(PQv + m * 4), "0")]
    def o3v(m):
        d, o = oreg(m, 0), oreg(m, 1)
        r = [f"v_add_f32 v{d}, {EPS:#x}, v{d}", f"v_rcp_f32 v{d}, v{d}", "s_nop 0"]
        r += [f"v_mul_f32 v{o+h}, v{d}, v{o+h}" for h in range(8)]
        r += [f"v_cvt_pk_bf16_f32 v{PQv+m*4+h}, v{o+h*2}, v{o+h*2+1}" for h in range(4)]
        r += [(f"buffer_store_dwordx4 {vr(PQv+m*4)}, v{vL16}, {SW}, {sT2} offen sc1", "ost")]
        if m < 3: r += [f"s_add_u32 {sT2}, {sT2}, {A2_KB*1024}"]
        return r
    gloads = [f"s_lshl_b32 s4, {sRB}, 10", f"s_lshl_b32 s5, {sKQ}, 8", "s_and_b32 s5, s5, 512", "s_add_u32 s4, s4, s5",
              f"s_lshl_b32 s5, {sI}, 8", "s_add_u32 s4, s4, s5", f"s_add_u32 {sT}, s4, {WS_G}"]
    gloads += [(f"buffer_load_dword v{vG+m}, v{vGa}, {SW}, {sT} offen offset:{m*64}", "g") for m in range(4)]

    tq = [0]
    def send(R, L):
        d = (R << 1) | (1 - L)
        out = []
        for m in range(4):
            r = [f"s_add_u32 {sT2}, {sXo}, {d << 14}"] if m == 0 else []
            x = T + 4 * (tq[0] % 4); tq[0] += 1
            for t in range(2):
                for h in range(2):
                    r.append(f"v_cvt_pk_bf16_f32 v{x+2*t+h}, v{acc(R,L,t,m)+2*h}, v{acc(R,L,t,m)+2*h+1}")
            r.append((f"buffer_store_dwordx4 {vr(x)}, v{vL16}, {SW}, {sT2} offen offset:{m*1024} sc1", "xst"))
            out.append(r)
        return out
    sends = send(0, 0) + send(1, 0) + send(1, 1)
    SPLAN = [int(c) for c in str(cfg.get("splan", "84"))]
    RPLAN = str(cfg.get("rplan", "12"))
    RX = acc(1, 0, 0, 0)
    def rx(d, m): return RX + ((d - 1) * 4 + m) * 4
    def recv(d):
        return [(f"buffer_load_dwordx4 {vr(rx(d, m))}, v{vL16}, {SW}, {sXi[d]} offen offset:{m*1024} sc1", ("rx", d)) for m in range(4)]
    def addrx(d):
        r = []
        for m in range(4):
            for t in range(2):
                for h in range(2):
                    s_ = rx(d, m) + 2 * t + h; b = acc(0, 1, t, m) + 2 * h; x = T + 2 * ((2 * t + h) & 1)
                    r += [f"v_lshlrev_b32 v{x}, 16, v{s_}", f"v_and_b32 v{x+1}, 0xffff0000, v{s_}", f"v_pk_add_f32 {vr(b,2)}, {vr(b,2)}, {vr(x,2)}"]
        return r

    def spin(lab, load, test):
        e(f"""
        {test}
        s_cbranch_scc1 {lab}_ok
        s_mov_b32 s5, 0
        {lab}_spin:
        s_add_u32 s5, s5, 1
        s_cmp_gt_u32 s5, 0x40000
        s_cbranch_scc1 {lab}_ok
        s_sleep 1
        {load}
        s_waitcnt vmcnt(0)
        {test}
        s_cbranch_scc0 {lab}_spin
        {lab}_ok:
        """)
    cnt_load = f"buffer_load_dword v{vFl}, off, {SW}, {sCntC} sc1"
    cnt_test = f"v_readfirstlane_b32 s4, v{vFl}\ns_nop 0\ns_cmp_ge_u32 s4, 32"
    fl_load = f"buffer_load_dwordx4 {vr(vFl)}, off, {SW}, {sT} sc1"
    fl_test = f"v_and_b32 v{vFl}, v{vFl+1}, v{vFl+2}\nv_and_b32 v{vFl}, v{vFl}, v{vFl+3}\ns_nop 0\nv_readfirstlane_b32 s4, v{vFl}\ns_nop 0\ns_cmp_eq_u32 s4, 1"

    RATE = cfg.get("rate", 8)
    OAT = cfg.get("oat", 4)
    stream = []
    for u in range(4, NP + 1):
        stream += [(u - NR - 1, x) for x in slot(u)]
        if u >= OAT:
            k = cfg.get("oper", 2)
            while oloads and k > 0:
                x = oloads.pop(0); stream.append((0, x))
                if isinstance(x, tuple): k -= 1
    isv = lambda x: isinstance(x, tuple)
    state = dict(o=0, sig=False, cnt=None, fl=None, pf=None, rx=0, add=0)
    FPD = cfg.get("fpd", 2)
    for p in range(NP):
        ph1 = p < NP1
        cur[0] = p
        mf = []
        if ph1:
            J, L = p // 2, p & 1
            order = [(R, t) for t in range(2) for R in range(2)]
            if p == NP1 - 1: order = [(1, 0), (1, 1), (0, 0), (0, 1)]
            for R, t in order:
                for m in range(4):
                    for ks in range(2):
                        mf.append(mfma(vr(acc(R, L, t, m)), ar(bfr(L, t, ks)), ar(afr(J & 1, R, m, ks)), "0" if (J == 0 and ks == 0) else None))
        else:
            s2 = p - NP1
            for t in range(2):
                for m in range(4):
                    for ks in range(2):
                        mf.append(mfma(vr(acca(t, m)), ar(bfr(s2 & 1, t, ks)), ar(afr((NS1 + s2) & 1, 0, m, ks)), "0" if (s2 == 0 and ks == 0) else None))
        N = len(mf)
        G = Gaps(N)
        if cfg.get("pstamp"):
            if p > 0: G.put(0, f"v_writelane_b32 v17, s{64 + 2*((p-1)&1)}, {p-1}")
            e(f"s_memrealtime s[{64 + 2*(p&1)}:{65 + 2*(p&1)}]")
        if p == NP1: stamp(e, 4, cfg)
        nxt = []
        budget = RATE if ph1 else 6
        DPLAN = str(cfg.get("dplan", "00"))
        if 0 <= p - (NP1 - 1) < len(DPLAN): budget = int(DPLAN[p - (NP1 - 1)])
        while stream and stream[0][0] <= p and (budget > 0 or not isv(stream[0][1])):
            x = stream[0][1]
            if not isv(x) and budget == 0 and " m0," in x: break
            stream.pop(0); nxt.append(x)
            if isv(x): budget -= 1
        first_o = any(isv(x) and x[1] == ("u", NP1 + 1) and "sc1" in x[0] for x in nxt) and state["cnt"] != "done"
        if first_o:
            assert state["cnt"] == "loaded" and "cnt" not in vq.q
            stamp(e, 3, cfg)
            spin("L2_o", cnt_load, cnt_test); state["cnt"] = "done"
        pre = []
        if state["cnt"] is None and p == NP1 + 1 - NR - 1 - 3:
            pre.append((cnt_load, "cnt")); state["cnt"] = "loaded"
        if p == 16: pre += gloads
        if state["fl"] is None and p > NP1 and "xst" not in vq.q and not sends:
            pre.append(["s_mov_b64 exec, 14", (f"buffer_store_dword v{vOne}, v{vFa}, {SW}, {sFl} offen sc1", "fl"), "s_mov_b64 exec, -1"])
            state["fl"] = p
        elif state["fl"] is not None and state["pf"] is None and p >= state["fl"] + FPD:
            pre += [f"s_lshl_b32 {sT}, s2, 7", f"s_add_u32 {sT}, {sT}, {sFl}", (fl_load, "pf")]
            state["pf"] = p
        elif state["pf"] is not None and state["rx"] < 3 and "pf" not in vq.q:
            if state["rx"] == 0: spin("L2_p", fl_load, fl_test)
            k = int(RPLAN[0]) if nxt else int(RPLAN[1])
            for _ in range(k):
                if state["rx"] < 3:
                    state["rx"] += 1; pre += recv(state["rx"])
        vm = pre + nxt
        if vm:
            nv = sum(1 for x in vm if isv(x) or isinstance(x, list))
            k = 0; pend = []
            for x in vm:
                if isv(x) or isinstance(x, list):
                    pos = 1 + (k * (N - 1)) // nv; k += 1
                    for y in pend: G.put(pos - 1, y)
                    pend = []
                    G.put(pos, x); lastpos = pos
                else:
                    pend.append(x)
            for y in pend: G.put(min(N - 1, lastpos + 1), y)
        if p + 2 <= NP:
            G.seq(reads(p + 2), 0, N - (5 if ph1 else 2))
        if state["o"] == 0 and not any(isv(x) and x[1] == "o" for _, x in stream) and "o" not in vq.q and not any(isv(x) and x[1] == "o" for x in nxt):
            G.seq(o1, 0, N - 4); state["o"] = 1
        elif state["o"] == 1:
            G.seq(o2, 0, N - 2); state["o"] = 2
        elif state["o"] in (2, 3) and not any(isv(x) and x[1] == "opq" for _, x in stream) and "opq" not in vq.q and not any(isv(x) and x[1] == "opq" for x in nxt):
            m0 = (state["o"] - 2) * 2
            G.seq(o3m(m0) + o3m(m0 + 1), 0, 7, cap=3)
            G.seq(o3v(m0) + o3v(m0 + 1), 12, N); state["o"] += 1
        elif state["o"] == 4 and "ost" not in vq.q:
            state["sig"] = p
            state["o"] = 5
            G.put(1, [f"s_cmp_eq_u32 {sW}, 0", "s_cbranch_scc0 L2_nosig", "s_mov_b64 exec, 1",
                      f"buffer_atomic_add v{vOne}, off, {SW}, {sCntP}|x", "s_mov_b64 exec, -1", "L2_nosig:"])
        if 0 <= p - (NP1 - 1) < len(SPLAN):
            k = SPLAN[p - (NP1 - 1)]
            G.seq(sum(sends[:k], []), 6 if ph1 else 0, N, cap=3); del sends[:k]
        if state["add"] < state["rx"] and ("rx", state["add"] + 1) not in vq.q and not any(isv(x) and x[1] == ("rx", state["add"] + 1) for x in pre):
            state["add"] += 1
            G.seq(addrx(state["add"]), 0, N, cap=4)
        for x in place(mf, G.items):
            if isinstance(x, str) and x.endswith("|x"): e(x[:-2])
            else: emit(x)
        if p + 3 <= NP:
            assert not any(isv(x) and x[1] == ("u", p + 3) for _, x in stream), p
            old = [t for t in AGE if t in vq.q and p - born[t] >= AGE[t]]
            e(f"s_waitcnt vmcnt({vq.need(('u', p + 3), *old)}) lgkmcnt(0)")
            e("s_barrier")
        elif p + 2 <= NP:
            old = [t for t in AGE if t in vq.q and p - born[t] >= AGE[t]]
            e(f"s_waitcnt vmcnt({vq.need(*old)}) lgkmcnt(0)")
    assert state["o"] == 5 and state["cnt"] == "done" and state["pf"] is not None, state
    stamp(e, 5, cfg)
    if state["rx"] < 3:
        if state["rx"] == 0:
            e("s_waitcnt vmcnt(0)"); vq.q = []
            spin("L2_p", fl_load, fl_test)
        while state["rx"] < 3:
            state["rx"] += 1; emit(recv(state["rx"]))
    vOa = T + 16
    e(f"""
    v_and_b32 v{vOa}, 15, v{vL}
    v_bfe_u32 v{T+1}, v{vL}, 4, 1
    v_lshrrev_b32 v{T+2}, 5, v{vL}
    v_lshlrev_b32 v{vOa}, 11, v{vOa}
    v_lshl_add_u32 v{vOa}, v{T+1}, 5, v{vOa}
    v_lshl_add_u32 v{vOa}, v{T+2}, 4, v{vOa}
    s_lshl_b32 s4, {sRB}, 19
    s_lshl_b32 s5, {sKQ}, 17
    s_and_b32 s5, s5, {1 << 18}
    s_add_u32 s4, s4, s5
    s_lshl_b32 s5, {sI}, 17
    s_add_u32 s4, s4, s5
    s_lshl_b32 s5, {sJ}, 6
    s_add_u32 s4, s4, s5
    s_add_u32 s4, s4, {sCol}
    """)
    while state["add"] < 3:
        state["add"] += 1
        e(f"s_waitcnt vmcnt({vq.need(('rx', state['add']))})")
        for x in addrx(state["add"]): e(x)
    for m in range(4):
        gg = T + 4; og = T + 6
        e(f"v_mov_b32 v{gg}, v{vG+m}")
        e(f"v_sub_f32 v{og}, 1.0, v{vG+m}")
        for t in range(2):
            for h in range(2):
                b = acc(0, 1, t, m) + 2 * h; a = acca(t, m) + 2 * h
                e(f"v_pk_mul_f32 {vr(b,2)}, {vr(b,2)}, {vr(og,2)} op_sel_hi:[1,0]")
                e(f"v_pk_fma_f32 {vr(b,2)}, {vr(a,2)}, {vr(gg,2)}, {vr(b,2)} op_sel_hi:[1,0,1]")
        r = acc(0, 0, 0, m)
        for t in range(2):
            for h in range(2):
                e(f"v_cvt_pk_bf16_f32 v{r+2*t+h}, v{acc(0,1,t,m)+2*h}, v{acc(0,1,t,m)+2*h+1}")
        e(f"""
        s_nop 1
        v_permlane16_swap_b32 v{r}, v{r+2}
        v_permlane16_swap_b32 v{r+1}, v{r+3}
        buffer_store_dwordx4 {vr(r)}, v{vOa}, {SO}, s4 offen {cfg.get("sto", "")}
        """)
        if m < 3: e(f"s_add_u32 s4, s4, {16*2048}")
    if cfg.get("stamps"):
        stamp(e, 6, cfg)
        e("s_waitcnt vmcnt(0)")
        stamp(e, 7, cfg)
        stamp_flush(e, cfg, 8, 1, SW, "L2_st")
        if cfg.get("pstamp"):
            e(f"""
            v_writelane_b32 v17, s{64 + 2*((NP-1)&1)}, {NP-1}
            v_lshlrev_b32 v1, 2, v0
            s_lshl_b32 s3, s2, 8
            s_add_u32 s3, s3, {WS_STAMP + 0x10000}
            s_cmp_eq_u32 {sW}, 0
            s_cbranch_scc0 L2_st2
            buffer_store_dword v17, v1, {SW}, s3 offen
            L2_st2:
            """)
    e("L2_end:")
    e("s_endpgm")
    if cfg.get("verbose"): print(state)
    return K, e.text(), dict(vgpr=416, accum=256, sgpr=96)


def gen_k3(cfg):
    kA, iA, kB, iB, own = [int(c) for c in cfg["probe"]]
    e = Em()
    e(f"""
    s_cmp_ge_u32 s2, 1
    s_cbranch_scc1 L3_end
    s_load_dwordx2 s[4:5], s[0:1], 72
    v_lshlrev_b32 v1, 6, v0
    v_mov_b32 v2, 0
    s_waitcnt lgkmcnt(0)
    s_mov_b32 s8, s4
    s_mov_b32 s9, s5
    s_mov_b32 s10, {WS_SIZE}
    s_mov_b32 s11, 0x20000
    s_mov_b32 s12, {WS_STAMP + kA*16384 + iA*4}
    s_mov_b32 s13, {WS_STAMP + kB*16384 + iB*4}
    buffer_load_dword v3, v{1 if own else 2}, s[8:11], s12 offen
    buffer_load_dword v4, v1, s[8:11], s13 offen
    s_waitcnt vmcnt(0)
    v_sub_u32 v3, v4, v3
    v_min_u32 v3, 20000, v3
    s_memrealtime s[14:15]
    s_waitcnt lgkmcnt(0)
    L3_spin:
    s_memrealtime s[16:17]
    s_waitcnt lgkmcnt(0)
    s_sub_u32 s16, s16, s14
    v_cmp_lt_u32 vcc, s16, v3
    s_nop 4
    s_cbranch_vccnz L3_spin
    L3_end:
    s_endpgm
    """)
    return "gm3_kernel", e.text(), dict(vgpr=8, accum=8, sgpr=32)


HEAD = """; Kernarg layout for this problem (80 bytes, ptrs only, base s[0:1]):
;   offset   0: d_in[0] A_x  shape=(1, 2048, 1024) dtype=bfloat16
;   offset   8: d_in[1] A_wqkv  shape=(1024, 3072) dtype=bfloat16
;   offset  16: d_in[2] A_wo  shape=(1024, 1024) dtype=bfloat16
;   offset  32: d_in[4] B_w1  shape=(1024, 3584) dtype=bfloat16
;   offset  40: d_in[5] B_w2  shape=(3584, 1024) dtype=bfloat16
;   offset  48: d_in[6] gate_w  shape=(1024,) dtype=bfloat16
;   offset  56: d_out     shape=(1, 2048, 1024) dtype=bfloat16
"""


def build(cfg=None):
    cfg = cfg or {}
    ks = [gen_k1(cfg), gen_k2(cfg)]
    s = HEAD
    order = cfg.get("order", "12")
    if "0" in order:
        ks.append(("gm0_kernel", "  s_endpgm\n", dict(vgpr=8, accum=8, sgpr=16)))
    if "4" in order:
        e = Em()
        e(f"""
        s_memrealtime s[14:15]
        s_cmp_ge_u32 s2, 1
        s_cbranch_scc1 L4_end
        s_load_dwordx2 s[4:5], s[0:1], 72
        s_waitcnt lgkmcnt(0)
        s_mov_b32 s8, s4
        s_mov_b32 s9, s5
        s_mov_b32 s10, {WS_SIZE}
        s_mov_b32 s11, 0x20000
        s_mov_b32 s12, {WS_STAMP + 2*16384}
        v_mov_b32 v1, s14
        buffer_store_dword v1, off, s[8:11], s12 sc1
        L4_end:
        s_endpgm
        """)
        ks.append(("gm4_kernel", e.text(), dict(vgpr=8, accum=8, sgpr=32)))
    if "3" in order:
        ks.append(gen_k3(cfg))
    for c in order:
        s += f"; @launch kernel=gm{c}_kernel grid=(256,1,1) block=(256,1,1) lds={163840 if c in '12' else 0}\n"
    s += '.amdgcn_target "amdgcn-amd-amdhsa--gfx950"\n.text\n'
    for k, body, d in ks:
        s += f".globl {k}\n.p2align 8\n.type {k},@function\n{k}:\n" + body
    s += 'gm_text_end:\n.section .rodata,"a"\n'
    for k, body, d in ks:
        s += f""".p2align 6
.amdhsa_kernel {k}
  .amdhsa_next_free_vgpr {d['vgpr']}
  .amdhsa_next_free_sgpr {d['sgpr']}
  .amdhsa_accum_offset {d['accum']}
  .amdhsa_group_segment_fixed_size 0
  .amdhsa_kernarg_size 80
  .amdhsa_user_sgpr_count 2
  .amdhsa_user_sgpr_kernarg_segment_ptr 1
  .amdhsa_system_sgpr_workgroup_id_x 1
  .amdhsa_float_denorm_mode_32 3
.end_amdhsa_kernel
"""
    return s


if __name__ == "__main__":
    out = sys.argv[1] if len(sys.argv) > 1 else f"cdna_kernels/{NAME}.s"
    cfg = {}
    for a in sys.argv[2:]:
        k, v = a.split("=")
        cfg[k] = int(v) if (v.lstrip("-").isdigit() and k not in ("order", "probe", "dplan", "splan", "rplan")) else v
    txt = build(cfg)
    import hazard
    assert hazard.check(txt) == 0
    open(out, "w").write(txt)
    print("wrote", out)
```

```python
import sys

NAME = "gated_mix__linear_attn_block__dense_activation_relu__prompt"

A2_KB = 144
WS_A2 = 0
WS_PQ = 0x1200000
WS_KVP = 0x1600000
WS_ZP = 0x1700000
WS_G = 0x1710000
WS_FLAG = 0x1720000
WS_CNT = 0x1730000
WS_STAMP = 0x1740000
WS_XCH = 0x1800000
WS_SIZE = 0x2800000

LOG2E = 0x3fb8aa3b
EPS = 0x358637bd


class Em:
    def __init__(self):
        self.l = []

    def __call__(self, s):
        for x in s.strip("\n").split("\n"):
            x = x.strip()
            if x:
                self.l.append(x if x.endswith(":") else "  " + x)

    def text(self):
        return "\n".join(self.l) + "\n"


def place(mf, items):
    by = {}
    for p, ins in items:
        by.setdefault(p, []).extend(ins if isinstance(ins, list) else [ins])
    out = list(by.get(-1, []))
    for i, x in enumerate(mf):
        out.append(x)
        out += by.get(i, [])
    assert all(-1 <= p < len(mf) for p in by), (sorted(by), len(mf))
    return out


def vr(b, n=4, c="v"):
    return f"{c}[{b}:{b+n-1}]" if n > 1 else f"{c}{b}"


def ar(b, n=4):
    return vr(b, n, "a")


def mfma(d, a, b, c=None):
    return f"v_mfma_f32_16x16x32_bf16 {d}, {a}, {b}, {d if c is None else c}"


def spread(n, lo, hi, avoid=()):
    free = [p for p in range(lo, hi) if p not in avoid]
    return [free[(i * len(free)) // n] for i in range(n)]


def stamp(e, idx, cfg, mode=1):
    if cfg.get("stamps") and (cfg.get("smode", 1) == mode or idx == 0):
        e(f"s_memrealtime s[{70+2*idx}:{71+2*idx}]")


def stamp_flush(e, cfg, nst, kidx, srd, lab):
    if not cfg.get("stamps"):
        return
    e("s_waitcnt lgkmcnt(0)")
    for i in range(nst):
        e(f"v_mov_b32 v{2+i}, s{70+2*i}")
    e(f"""
    s_lshl_b32 s3, s2, 6
    s_add_u32 s3, s3, {WS_STAMP + kidx*16384}
    v_mov_b32 v1, 0
    v_cmp_eq_u32 vcc, 0, v0
    s_and_saveexec_b64 s[68:69], vcc
    s_cbranch_execz {lab}
    buffer_store_dwordx4 v[2:5], v1, {srd}, s3 offen
    buffer_store_dwordx4 v[6:9], v1, {srd}, s3 offen offset:16
    {lab}:
    s_mov_b64 exec, s[68:69]
    """)


def gen_k1(cfg):
    e = Em()
    K = "gm1_kernel"
    ST = cfg.get("st1", "sc1")
    SA, SB0, SB1, SW = "s[8:11]", "s[12:15]", "s[16:19]", "s[20:23]"
    sW, sMT, sTYPE, sIDX, sSH, sQD = "s24", "s25", "s26", "s27", "s28", "s29"
    sAlo, sAhi, sB0, sB1, sB0st, sB1st, sLds, sIt = "s30", "s31", "s32", "s33", "s34", "s35", "s36", "s37"
    sI, sJ = "s38", "s39"
    vL, vL16 = 1, 2
    vA, vB0, vB1 = 4, 8, 12
    rA, rB = 16, 20
    T = 24
    ACC = 48
    def acc(L, t, m):
        if L == 3:
            return ACC + 192 + (t * 2 + m) * 4
        return ACC + ((L * 2 + t) * 8 + m) * 4
    def afr(buf, m, ks): return buf * 64 + (m * 2 + ks) * 4
    def bfr(L, t, ks): return 128 + ((L * 2 + t) * 2 + ks) * 4
    GX = 192

    SPARE = 131072
    PF = cfg.get("pf", 4)
    LEAD = cfg.get("lead", 3)
    W2 = cfg.get("w2mode", 2)
    W2M = {1: (0x60, 0x60), 2: (0x60, 0), 3: (0x40, 0x40)}[W2]
    XT = 1 if PF == 4 else 0
    sCe = "s87"
    SP, sP, sPst, vP, vD = "s[88:91]", "s92", "s93", 3, 224
    sCls, sPn = "s99", "s98"
    def lines(txt): return [x.strip() for x in txt.strip().split("\n") if x.strip()]

    def dmaA(ldsoff, sreg):
        r = [f"s_add_u32 m0, {sLds}, {ldsoff}"]
        r += [f"buffer_load_dwordx4 v{vA+q}, {SA}, {sreg} offen offset:{q*1024} {cfg.get('pa1','')} lds" for q in range(4)]
        r += [f"s_add_u32 {sreg}, {sreg}, 128"]
        return r

    def dmaB(ldsoff, odd):
        srd, vb, sreg, sst = (SB1, vB1, sB1, sB1st) if odd else (SB0, vB0, sB0, sB0st)
        r = [f"s_add_u32 m0, {sLds}, {ldsoff}"]
        r += [f"buffer_load_dwordx4 v{vb+q}, {srd}, {sreg} offen offset:{q*1024} {cfg.get('pb1','')} lds" for q in range(4)]
        r += [f"s_add_u32 {sreg}, {sreg}, {sst}"]
        return r

    def burst(g):
        e(g[0]); e("s_nop 0")
        for x in g[1:]: e(x)

    def mix(main, fill):
        for i in range(len(main)):
            e(main[i])
            for x in fill[(i * len(fill)) // len(main):((i + 1) * len(fill)) // len(main)]: e(x)

    touch = f"buffer_load_dword a{vD}, v{vP}, {SP}, {sP} offen"
    tadv = f"s_add_u32 {sP}, {sP}, {sPst}"

    T0 = cfg.get("t0", 2)
    def pfsetup():
        e(f"""
        s_bfe_u32 {sCls}, s86, 0x20003
        s_mov_b32 s91, 0x20000
        v_lshlrev_b32 v{vP}, 7, v{vL}
        v_mov_b32 v{T+6}, 0x40000000
        s_cmp_eq_u32 {sI}, 0
        s_cbranch_scc1 L1_pfa
        s_lshl_b32 s5, {sJ}, 1
        s_xor_b32 {sCls}, {sCls}, s5
        s_mov_b32 s88, s46
        s_mov_b32 s89, s47
        s_mov_b32 s90, {3584*2048}
        s_mov_b32 {sPst}, 7168
        s_lshl_b32 s5, s2, 1
        s_add_u32 s5, s5, {sJ}
        s_mul_i32 {sP}, s5, {2*7168}
        s_cmp_eq_u32 {sJ}, 0
        s_mov_b32 {sPn}, {W2M[1]}
        s_cmov_b32 {sPn}, {W2M[0]}
        v_cmp_le_u32 vcc, {sPst}, v{vP}
        s_branch L1_pfd
        L1_pfa:
        s_mov_b32 {sPn}, 31
        s_cmp_eq_u32 {sJ}, 0
        s_cbranch_scc0 L1_pfx
        s_bitcmp0_b32 s2, 0
        s_cselect_b32 s88, s42, s44
        s_cselect_b32 s89, s43, s45
        s_mov_b32 s5, 7168
        s_cmov_b32 s5, 6144
        s_lshl_b32 s90, s5, 10
        s_lshl_b32 {sPst}, s5, 7
        s_lshr_b32 s6, s2, 1
        s_mul_i32 {sP}, s6, s5
        {'' if T0 else tadv}
        v_cmp_le_u32 vcc, s5, v{vP}
        s_branch L1_pfd
        L1_pfx:
        s_mov_b32 s88, s40
        s_mov_b32 s89, s41
        s_mov_b32 s90, {2048*2048}
        s_mov_b32 {sPst}, 256
        s_lshl_b32 {sP}, s2, 14
        s_add_u32 {sP}, {sP}, {128 if T0 else 384}
        v_lshrrev_b32 v{vP}, 1, v{vL}
        v_lshlrev_b32 v{vP}, 11, v{vP}
        v_and_b32 v{T+5}, 1, v{vL}
        v_cmp_lt_u32 vcc, 15, v{vL}
        v_lshl_add_u32 v{vP}, v{T+5}, 7, v{vP}
        L1_pfd:
        s_nop 1
        v_cndmask_b32 v{vP}, v{vP}, v{T+6}, vcc
        """)
    def tpro(n):
        e(f"""
        s_cmp_eq_u32 {sI}, 0
        s_cbranch_scc0 L1_tp{n}
        {touch}
        {tadv}
        L1_tp{n}:
        """)
    e(f"""
    s_cmp_ge_u32 s2, 256
    s_cbranch_scc1 L1_end
    """)
    stamp(e, 0, cfg)
    e(f"""
    s_load_dwordx4 s[40:43], s[0:1], 0
    s_load_dwordx4 s[44:47], s[0:1], 32
    s_load_dwordx2 s[48:49], s[0:1], 72
    s_load_dwordx2 s[94:95], s[0:1], 48
    s_load_dwordx2 s[96:97], s[0:1], 16
    s_mov_b32 s86, s2
    """)
    XM1 = {0: None, 1: [2, 3, 4, 0, 1, 5], 2: [0, 3, 2, 1, 4, 5]}[cfg.get("xmap1", 0)]
    if XM1:
        e("s_and_b32 s2, s86, 0xc0")
        for lb, pb in enumerate(XM1):
            e(f"s_bfe_u32 s3, s86, {0x10000 | pb}\ns_lshl_b32 s3, s3, {lb}\ns_or_b32 s2, s2, s3")
    e(f"""
    v_lshrrev_b32 v3, 6, v0
    v_and_b32 v{vL}, 63, v0
    v_readfirstlane_b32 {sW}, v3
    v_lshrrev_b32 v{T}, 3, v{vL}
    v_lshrrev_b32 v{T+1}, 4, v{vL}
    v_and_b32 v{T+2}, 7, v{vL}
    v_xor_b32 v{T+3}, v{T+2}, v{T+1}
    v_lshlrev_b32 v{T+4}, 11, v{T}
    v_lshl_add_u32 v{vA}, v{T+3}, 4, v{T+4}
    v_xor_b32 v{vA+1}, 64, v{vA}
    v_add_u32 v{vA+2}, {2*16384 - 2048}, v{vA}
    v_add_u32 v{vA+1}, {16384 - 1024}, v{vA+1}
    v_add_u32 v{vA+3}, {2*16384 - 2048}, v{vA+1}
    s_and_b32 s5, s2, 1
    s_lshl_b32 s5, s5, 2
    s_bfe_u32 s6, s2, 0x20003
    s_add_u32 {sMT}, s5, s6
    s_bfe_u32 {sQD}, s2, 0x20005
    s_lshr_b32 {sI}, {sW}, 1
    s_and_b32 {sJ}, {sW}, 1
    s_lshl_b32 {sLds}, {sW}, 12
    s_xor_b32 s4, {sJ}, {sQD}
    s_lshl_b32 s4, s4, 5
    s_lshl_b32 s5, {sMT}, 8
    s_lshl_b32 s6, {sI}, 7
    s_add_u32 s5, s5, s6
    s_add_u32 s6, s5, s4
    s_lshl_b32 {sAlo}, s6, 11
    s_xor_b32 {sAhi}, {sAlo}, {64 << 11}
    s_mov_b32 s10, {2048*2048}
    s_mov_b32 s11, 0x20000
    s_waitcnt lgkmcnt(0)
    s_mov_b32 s8, s40
    s_mov_b32 s9, s41
    """)
    stamp(e, 1, cfg, 2)
    if PF == 4 and T0 == 1:
        pfsetup(); tpro(0)
    burst(dmaA(SPARE, sAlo))
    if PF == 4 and T0 == 2:
        pfsetup(); tpro(0)
    burst(dmaA(0, sAhi))
    e(f"""
    s_bfe_u32 s3, s2, 0x20001
    s_bfe_u32 {sTYPE}, s2, 0x10005
    s_lshr_b32 s5, s2, 6
    s_lshl_b32 s6, s3, 2
    s_add_u32 {sIDX}, s5, s6
    s_lshr_b32 {sSH}, {sIDX}, 1
    s_mul_i32 s50, {sSH}, 7
    s_and_b32 s51, {sIDX}, 1
    s_mul_i32 s51, s51, 3
    s_add_u32 s51, s51, s50
    s_add_u32 s50, s50, 6
    v_and_b32 v{T+3}, 1, v{T+1}
    v_lshlrev_b32 v{T+3}, 1, v{T+3}
    v_xor_b32 v{T+3}, v{T+3}, v{T+2}
    v_lshlrev_b32 v{T+3}, 4, v{T+3}
    v_xor_b32 v{T+4}, 64, v{T+3}
    s_cmp_eq_u32 {sTYPE}, 0
    s_cselect_b32 s52, {sIDX}, s51
    s_cselect_b32 s53, 16, 1
    s_cselect_b32 s16, s42, s44
    s_cselect_b32 s17, s43, s45
    s_mov_b32 s54, 7168
    s_cmov_b32 s54, 6144
    s_cmp_eq_u32 {sI}, 0
    s_cselect_b32 s4, s50, s52
    s_cselect_b32 s55, 7168, s54
    s_cselect_b32 s12, s44, s16
    s_cselect_b32 s13, s45, s17
    s_lshl_b32 s14, s55, 10
    s_mov_b32 s15, 0x20000
    s_lshl_b32 s7, {sJ}, 5
    s_lshl_b32 s4, s4, 7
    s_mul_i32 s6, s7, s55
    s_add_u32 {sB0}, s4, s6
    s_lshl_b32 {sB0st}, s55, 6
    """)
    def bvoff(vb, sp):
        e(f"""
        s_lshl_b32 s4, {sp}, 3
        s_sub_u32 s4, s4, 1024
        s_lshl_b32 s5, s4, 1
        v_mul_lo_u32 v{T+5}, v{T}, {sp}
        v_add_u32 v{vb}, v{T+5}, v{T+3}
        v_add3_u32 v{vb+1}, v{T+5}, v{T+4}, s4
        v_add_u32 v{vb+2}, s5, v{vb}
        v_add_u32 v{vb+3}, s5, v{vb+1}
        """)
    bvoff(vB0, "s55")
    burst(dmaB(16384, 0))
    e(f"""
    s_add_u32 s4, {sI}, 1
    s_mul_i32 s4, s4, s53
    s_add_u32 s4, s4, s52
    s_lshl_b32 s4, s4, 7
    s_mul_i32 s6, s7, s54
    s_add_u32 {sB1}, s4, s6
    s_lshl_b32 {sB1st}, s54, 6
    s_lshl_b32 s18, s54, 10
    s_mov_b32 s19, 0x20000
    """)
    bvoff(vB1, "s54")
    e(f"""
    v_lshlrev_b32 v{vL16}, 4, v{vL}
    v_and_b32 v{T}, 15, v{vL}
    v_lshrrev_b32 v{T+3}, 1, v{T}
    v_xor_b32 v{T+3}, v{T+3}, v{T+1}
    v_lshlrev_b32 v{T+3}, 4, v{T+3}
    v_lshl_add_u32 v{T+3}, v{T}, 7, v{T+3}
    s_lshl_b32 s4, {sI}, 13
    v_add_u32 v{rA}, s4, v{T+3}
    v_xor_b32 v{rA+1}, 64, v{rA}
    v_add_u32 v{rA+2}, 0x10000, v{rA}
    v_add_u32 v{rA+3}, 0x10000, v{rA+1}
    v_bfe_u32 v{T}, v{vL}, 2, 2
    v_lshl_add_u32 v{T+3}, v{T+1}, 3, v{T}
    v_lshlrev_b32 v{T+3}, 7, v{T+3}
    v_bfe_u32 v{T+4}, v{vL}, 3, 2
    s_lshl_b32 s4, {sJ}, 1
    v_xor_b32 v{T+4}, s4, v{T+4}
    v_lshl_add_u32 v{T+3}, v{T+4}, 5, v{T+3}
    v_and_b32 v{T+4}, 3, v{vL}
    v_lshl_add_u32 v{T+3}, v{T+4}, 3, v{T+3}
    v_add_u32 v{rB}, 16384, v{T+3}
    v_xor_b32 v{rB+1}, 32, v{rB}
    v_add_u32 v{rB+2}, 0x10000, v{rB}
    v_add_u32 v{rB+3}, 0x10000, v{rB+1}
    s_mov_b32 s20, s48
    s_mov_b32 s21, s49
    s_mov_b32 s22, {WS_SIZE}
    s_mov_b32 s23, 0x20000
    """)
    if PF == 4 and not T0: pfsetup()
    CPF = cfg.get("cpf", 1)
    SC = "s[4:7]"
    def codetouch(first, nlines, lab):
        return ["s_mov_b32 s4, s62", "s_mov_b32 s5, s63",
                f"s_mov_b32 s6, gm_text_end-{first}", "s_mov_b32 s7, 0x20000", "s_lshr_b32 s3, s86, 3", f"s_mul_i32 s3, s3, {nlines*128}",
                f"v_lshlrev_b32 v{T+7}, 7, v{vL}", [f"s_mov_b64 exec, {(1 << nlines) - 1}", f"buffer_load_dword a{vD}, v{T+7}, {SC}, s3 offen", "s_mov_b64 exec, -1"]]
    if CPF:
        e("s_getpc_b64 s[62:63]\nL1_cpa:\ns_add_u32 s62, s62, L1_loopQ-L1_cpa\ns_addc_u32 s63, s63, 0")
        e(f"s_cmp_eq_u32 {sW}, 3")
        e("s_cbranch_scc0 L1_cp0")
        for x in codetouch("L1_loopQ", 5, "L1_cpa"):
            for y in (x if isinstance(x, list) else [x]): e(y)
        e("L1_cp0:")
    stamp(e, 2, cfg, 2)
    mix(dmaB(32768 + 16384, 1) + dmaA(32768, sAlo), [f"v_mov_b32 v{ACC+i}, 0" for i in range(208)])
    if PF == 4: tpro(1)

    def rdA(ring, buf, half):
        r = []
        for mm in range(4):
            for ks in range(2):
                r.append(f"ds_read_b128 {ar(afr(buf, half*4+mm, ks))}, v{rA+ks+2*(ring>>1)} offset:{(ring&1)*32768 + mm*2048}")
        return r

    def rdB(ring, odd):
        r = []
        for li, L in enumerate((1, 2) if odd else (3, 0)):
            for t in range(2):
                for ks in range(2):
                    for hf in range(2):
                        r.append(f"ds_read_b64_tr_b16 {ar(bfr(L, t, ks)+hf*2, 2)}, v{rB+t+2*(ring>>1)} offset:{(ring&1)*32768 + li*8192 + ks*4096 + hf*512}")
        return r

    stamp(e, 3, cfg, 2)
    e(f"""
    v_add_u32 v{T}, 0x20000, v{rA}
    v_add_u32 v{T+1}, 0x20000, v{rA+1}
    s_waitcnt vmcnt(8)
    s_barrier
    """)
    stamp(e, 1, cfg); stamp(e, 4, cfg, 2)
    rd = rdB(0, 0) + [f"ds_read_b128 {ar(afr(0, mm, ks))}, v{T+ks} offset:{mm*2048}" for mm in range(4) for ks in range(2)] + rdA(0, 0, 1)
    for x in rd[:12]: e(x)
    mix(dmaB(2 * 32768 + 16384, 0) + dmaA(2 * 32768, sAhi), rd[12:])
    if LEAD == 3:
        burst(dmaB(3 * 32768 + 16384, 1))
        burst(dmaA(3 * 32768, sAlo))
    stamp(e, 5, cfg, 2)
    e(f"""
    s_mov_b32 {sIt}, 0
    """)
    if PF == 4:
        e(f"""
        s_cmp_eq_u32 {sI}, 0
        s_cbranch_scc0 L1_tp2
        {touch}
        {tadv}
        s_waitcnt vmcnt({8*(LEAD-1) + 2})
        s_branch L1_tp3
        L1_tp2:
        """)
    e(f"""
    s_waitcnt vmcnt({8*(LEAD-1)})
    L1_tp3:
    s_waitcnt lgkmcnt(0)
    s_barrier
    """)
    stamp(e, 6, cfg); stamp(e, 6, cfg, 2)
    e(f"""
    s_cmp_eq_u32 {sTYPE}, 0
    s_cbranch_scc0 L1_loopH
    """)

    def body(typ, last, lab):
        for st in range(2):
            mf = []
            for L, nm in ((3, 2), (0, 8), (1, 8), (2, 8)):
                for t in range(2):
                    for m in range(nm):
                        for ks in range(2):
                            d = vr(acc(L, t, m)); w = ar(bfr(L, t, ks)); x = ar(afr(st, m, ks))
                            mf.append(mfma(d, x, w) if (typ == 0 and L in (1, 2)) else mfma(d, w, x))
            it = []
            for hp in range(2):
                per = 2 * st + hp
                ring = (per + 1) & 3
                base = hp * 52
                odd = 1 - hp
                dpos = [base + 3 + 6 * d for d in range(8)]
                if cfg.get("stamps") and per == 0: it.append((base, "s_memrealtime s[100:101]"))
                if cfg.get("stamps") and per == 1: it.append((base, [f"s_mov_b32 m0, {sIt}", f"v_writelane_b32 v45, s100, m0"]))
                if cfg.get("stamps") and per == 3 and last: it.append((base, f"v_accvgpr_write_b32 a225, v45"))
                dring = (ring + LEAD) & 3
                dodd = dring & 1
                if not last or per + LEAD <= 2:
                    gB = dmaB(dring * 32768 + 16384, dodd)
                    gA = dmaA(dring * 32768, sAlo if dodd else sAhi)
                    for gi, g in enumerate((gB, gA)):
                        if last and gi == 1: continue
                        it.append((dpos[gi * 4] - 1, g[0]))
                        for q in range(4): it.append((dpos[gi * 4 + q], g[1 + q]))
                        it.append((dpos[gi * 4 + 3] + 1, g[5]))
                if not last and PF == 4:
                    pp = base + cfg.get("pfpos", 48)
                    it.append((pp - 1, f"s_cmp_eq_u32 {sCe}, {per}"))
                    it.append((pp, [f"s_cbranch_scc0 {lab}_nt{per}", touch, tadv, f"{lab}_nt{per}:"]))
                    if per == 0:
                        it.append((base + 1, [f"s_bitcmp1_b32 {sPn}, {sIt}", f"s_cselect_b32 {sCe}, {sCls}, 7"]))
                GP = 0
                if last and per == 0 and PF == 4:
                    p0 = base + 46
                    if W2 == 2:
                        it.append((p0, [f"s_cmp_eq_u32 {sW}, 3", f"s_cbranch_scc0 {lab}_lt", touch, tadv, touch, f"{lab}_lt:"]))
                    if W2 == 3:
                        it.append((p0, [f"s_cmp_eq_u32 {sI}, 1", f"s_cbranch_scc0 {lab}_lt", touch, f"{lab}_lt:"]))
                    it.append((p0 + 1, ["s_mov_b32 s88, s96", "s_mov_b32 s89, s97"]))
                    it.append((p0 + 2, [f"s_mov_b32 s90, {1024*2048}", f"s_lshr_b32 {sP}, s4, 1"]))
                    it.append((p0 + 3, f"v_lshlrev_b32 v{vP}, 7, v{vL}"))
                    it.append((p0 + 4, ["s_mov_b64 exec, 0xffff", touch, "s_mov_b64 exec, -1"]))
                if last and per == 1 and CPF:
                    blk = [f"s_cmp_eq_u32 {sW}, 3", f"s_cbranch_scc0 {lab}_cp1"]
                    for x in codetouch("L1_loopQ", 12, f"{lab}_cpb"): blk += x if isinstance(x, list) else [x]
                    it.append((base + 46, blk + [f"{lab}_cp1:"]))
                if last and per == GP:
                    ex = ["s_mov_b32 s56, s94", "s_mov_b32 s57, s95", "s_mov_b32 s58, 2048", "s_mov_b32 s59, 0x20000",
                          f"v_and_b32 v{T+5}, 31, v{vL}", f"v_lshlrev_b32 v{T+5}, 4, v{T+5}", f"v_lshrrev_b32 v{T+6}, 5, v{vL}",
                          f"v_lshl_add_u32 v{T+6}, v{T+6}, 11, v{T+5}", "s_lshl_b32 s4, s2, 2", f"s_add_u32 s4, s4, {sW}", "s_lshl_b32 s4, s4, 12"]
                    for i, x in enumerate(ex): it.append((base + i, x))
                    for u in range(4):
                        it.append((base + 23 + 3 * u, f"buffer_load_dwordx4 {ar(GX+u*4)}, v{T+6}, {SA}, s4 offen offset:{u*512}"))
                        it.append((base + 35 + 3 * u, f"buffer_load_dwordx4 {ar(GX+16+u*4)}, v{T+5}, s[56:59], 0 offen offset:{u*512}"))
                rb = rdB(ring, odd); ra = rdA(ring, 1 - st, 0 if odd else 1)
                if last and per == 3: rb, ra = [], []
                if last and per == 2: ra = []
                rd = rb[:4]
                rest_b = rb[4:]
                k = 0
                for i in range(len(ra)):
                    rd.append(ra[i])
                    n = (len(rest_b) * (i + 1)) // len(ra)
                    rd += rest_b[k:n]; k = n
                rd += rest_b[k:]
                if rd:
                    pos = spread(len(rd), base, base + 44, avoid=dpos)
                    for p, x in zip(pos, rd): it.append((p, x))
                if hp == 0:
                    issued = sum(1 for p in pos if p <= 39)
                    it.append((39, f"s_waitcnt lgkmcnt({min(15, issued - 4)})"))
                if not last:
                    w = [f"s_waitcnt vmcnt({8*(LEAD-1)}) lgkmcnt(0)", "s_barrier"]
                else:
                    n0 = (8 if LEAD == 3 else 4) + 8 + XT
                    n1 = 8 + XT
                    w = [[f"s_waitcnt vmcnt({n0}) lgkmcnt(0)", "s_barrier"], [f"s_waitcnt vmcnt({n1}) lgkmcnt(0)", "s_barrier"],
                         ["s_waitcnt lgkmcnt(0)"], []][per]
                if per == 3 and not last:
                    it.append((base + 43, f"s_add_u32 {sIt}, {sIt}, 1"))
                    it.append((base + 50, f"s_cmp_lt_u32 {sIt}, 7"))
                    w.append(f"s_cbranch_scc1 {lab}")
                it.append((base + 51, w))
            for x in place(mf, it): e(x)

    def loop(typ):
        lab = "L1_loopH" if typ else "L1_loopQ"
        e(".p2align 3")
        e(f"{lab}:")
        body(typ, False, lab)
        body(typ, True, lab)

    def blockbase(m, dst, kbs, extra):
        e(f"""
        s_xor_b32 {dst}, s60, {m}
        s_add_u32 {dst}, {dst}, s61
        s_mul_i32 {dst}, {dst}, {kbs*1024}
        s_add_u32 {dst}, {dst}, {extra}
        """)

    tmpi = [0]
    def tq():
        r = T + 4 * (tmpi[0] % 4); tmpi[0] += 1
        return r

    def relu_store(a0, a1, soff, imm):
        r = tq()
        e(f"""
        v_cvt_pk_bf16_f32 v{r}, v{a0}, v{a0+1}
        v_cvt_pk_bf16_f32 v{r+1}, v{a0+2}, v{a0+3}
        v_cvt_pk_bf16_f32 v{r+2}, v{a1}, v{a1+1}
        v_cvt_pk_bf16_f32 v{r+3}, v{a1+2}, v{a1+3}
        v_pk_max_i16 v{r}, v{r}, 0
        v_pk_max_i16 v{r+1}, v{r+1}, 0
        v_pk_max_i16 v{r+2}, v{r+2}, 0
        v_pk_max_i16 v{r+3}, v{r+3}, 0
        buffer_store_dwordx4 {vr(r)}, v{vL16}, {SW}, {soff} offen offset:{imm} {ST}
        """)

    def epi_common():
        stamp(e, 2, cfg)
        e(f"""
        s_lshl_b32 s60, {sQD}, 1
        s_lshl_b32 s61, {sMT}, 4
        s_lshl_b32 s4, {sI}, 3
        s_add_u32 s61, s61, s4
        s_lshl_b32 s62, s50, 1
        s_add_u32 s62, s62, {sJ}
        s_lshl_b32 s62, s62, 10
        s_lshl_b32 s63, s51, 1
        s_add_u32 s63, s63, {sJ}
        s_lshl_b32 s63, s63, 10
        """)
        for m in range(2):
            blockbase(m, "s4", A2_KB, "s62")
            relu_store(acc(3, 0, m), acc(3, 1, m), "s4", 0)

    def phi4(a, P):
        e(f"""
        v_pk_mul_f32 {vr(P,2)}, {vr(a,2)}, s[64:65]
        v_pk_mul_f32 {vr(P+2,2)}, {vr(a+2,2)}, s[64:65]
        v_exp_f32_e64 v{P}, v{P} clamp
        v_max_f32 v{a}, s66, v{a}
        v_exp_f32_e64 v{P+1}, v{P+1} clamp
        v_max_f32 v{a+1}, s66, v{a+1}
        v_exp_f32_e64 v{P+2}, v{P+2} clamp
        v_max_f32 v{a+2}, s66, v{a+2}
        v_exp_f32_e64 v{P+3}, v{P+3} clamp
        v_max_f32 v{a+3}, s66, v{a+3}
        v_pk_add_f32 {vr(a,2)}, {vr(a,2)}, {vr(P,2)}
        v_pk_add_f32 {vr(a+2,2)}, {vr(a+2,2)}, {vr(P+2,2)}
        """)

    def pack8(dst, a0, a1):
        e(f"""
        v_cvt_pk_bf16_f32 v{dst}, v{a0}, v{a0+1}
        v_cvt_pk_bf16_f32 v{dst+1}, v{a0+2}, v{a0+3}
        v_cvt_pk_bf16_f32 v{dst+2}, v{a1}, v{a1+1}
        v_cvt_pk_bf16_f32 v{dst+3}, v{a1+2}, v{a1+3}
        """)

    loop(0)
    epi_common()
    e(f"""
    s_mov_b32 s64, {LOG2E}
    s_mov_b32 s65, {LOG2E}
    s_mov_b32 s66, {EPS}
    s_lshl_b32 s67, {sIDX}, 1
    s_add_u32 s67, s67, {sJ}
    s_lshl_b32 s5, s67, 10
    s_add_u32 s5, s5, {WS_PQ}
    """)
    P = T + 16
    for m in range(8):
        phi4(acc(0, 0, m), P); phi4(acc(0, 1, m), P + 4)
        blockbase(m, "s4", 32, "s5")
        r = tq()
        pack8(r, acc(0, 0, m), acc(0, 1, m))
        e(f"buffer_store_dwordx4 {vr(r)}, v{vL16}, {SW}, s4 offen {ST}")
    KV = acc(0, 0, 0)
    Z = KV + 16; ONES = KV + 24
    for i in range(4): e(f"v_mov_b32 v{ONES+i}, 0x3f803f80")
    for u in range(4):
        for t in range(2):
            phi4(acc(1, t, 2 * u), P); phi4(acc(1, t, 2 * u + 1), P + 4)
            pack8(acc(1, t, 2 * u), acc(1, t, 2 * u), acc(1, t, 2 * u + 1))
        for t in range(2):
            pack8(acc(2, t, 2 * u), acc(2, t, 2 * u), acc(2, t, 2 * u + 1))
        e("s_nop 1")
        for td in range(2):
            for te in range(2):
                d = vr(KV + (td * 2 + te) * 4)
                e(mfma(d, vr(acc(1, td, 2 * u)), vr(acc(2, te, 2 * u)), None if u else "0"))
            d = vr(Z + td * 4)
            e(mfma(d, vr(acc(1, td, 2 * u)), vr(ONES), None if u else "0"))
    e(f"""
    s_mul_i32 s4, {sJ}, 6144
    s_add_u32 s4, s4, {SPARE}
    v_add_u32 v{T}, s4, v{vL16}
    s_nop 7
    s_cmp_eq_u32 {sI}, 0
    s_cbranch_scc1 L1_q_rd
    """)
    for i in range(6): e(f"ds_write_b128 v{T}, {vr(KV+i*4)} offset:{i*1024}")
    e(f"""
    s_waitcnt vmcnt({10 + XT}) lgkmcnt(0)
    s_barrier
    s_branch L1_gate
    L1_q_rd:
    s_barrier
    """)
    R = KV + 32
    for i in range(6): e(f"ds_read_b128 {vr(R+i*4)}, v{T} offset:{i*1024}")
    e(f"""
    s_lshl_b32 s4, s67, 3
    s_add_u32 s4, s4, {sMT}
    s_lshl_b32 s4, s4, 12
    s_add_u32 s4, s4, {WS_KVP}
    s_lshl_b32 s5, s67, 10
    s_lshl_b32 s6, {sMT}, 6
    s_add_u32 s5, s5, s6
    s_add_u32 s5, s5, {WS_ZP}
    v_and_b32 v{T+1}, 48, v{vL}
    s_waitcnt lgkmcnt(0)
    """)
    for i in range(12): e(f"v_pk_add_f32 {vr(KV+i*2,2)}, {vr(KV+i*2,2)}, {vr(R+i*2,2)}")
    for i in range(4): e(f"buffer_store_dwordx4 {vr(KV+i*4)}, v{vL16}, {SW}, s4 offen offset:{i*1024} {ST}")
    e(f"""
    s_mov_b64 s[6:7], exec
    s_mov_b32 exec_lo, 0x00010001
    s_mov_b32 exec_hi, 0x00010001
    buffer_store_dwordx4 {vr(Z)}, v{T+1}, {SW}, s5 offen {ST}
    buffer_store_dwordx4 {vr(Z+4)}, v{T+1}, {SW}, s5 offen offset:512 {ST}
    s_mov_b64 exec, s[6:7]
    s_waitcnt vmcnt({16 + XT})
    s_branch L1_gate
    """)
    loop(1)
    epi_common()
    for m in range(8):
        blockbase(m, "s4", A2_KB, "s63")
        relu_store(acc(0, 0, m), acc(0, 1, m), "s4", 0)
        relu_store(acc(1, 0, m), acc(1, 1, m), "s4", 2048)
        e("s_add_u32 s5, s4, 4096")
        relu_store(acc(2, 0, m), acc(2, 1, m), "s5", 0)
    G0 = ACC + 64
    e(f"s_waitcnt vmcnt({26 + XT})")
    e("L1_gate:")
    stamp(e, 3, cfg)
    for i in range(32): e(f"v_accvgpr_read_b32 v{G0+i}, a{GX+i}")
    e(f"v_mov_b32 v{G0+32}, 0")
    e(f"v_mov_b32 v{G0+33}, 0")
    for i in range(16): e(f"v_dot2c_f32_bf16 v{G0+32+(i&1)}, v{G0+i}, v{G0+16+i}")
    g = G0 + 32
    e(f"""
    s_nop 2
    v_add_f32 v{g}, v{g}, v{g+1}
    s_nop 1
    v_add_f32_dpp v{g}, v{g}, v{g} quad_perm:[1,0,3,2] row_mask:0xf bank_mask:0xf
    s_nop 1
    v_add_f32_dpp v{g}, v{g}, v{g} quad_perm:[2,3,0,1] row_mask:0xf bank_mask:0xf
    s_nop 1
    v_add_f32_dpp v{g}, v{g}, v{g} row_half_mirror row_mask:0xf bank_mask:0xf
    s_nop 1
    v_add_f32_dpp v{g}, v{g}, v{g} row_mirror row_mask:0xf bank_mask:0xf
    s_nop 1
    v_add_f32_dpp v{g}, v{g}, v{g} row_bcast:15 row_mask:0xa bank_mask:0xf
    v_mul_f32 v{g}, 0xbfb8aa3b, v{g}
    v_exp_f32 v{g}, v{g}
    v_lshrrev_b32 v{g+1}, 5, v{vL}
    v_add_f32 v{g}, 1.0, v{g}
    v_rcp_f32 v{g}, v{g}
    v_lshlrev_b32 v{g+1}, 2, v{g+1}
    s_lshl_b32 s4, s2, 2
    s_add_u32 s4, s4, {sW}
    s_lshl_b32 s5, s4, 3
    s_add_u32 s5, s5, {WS_G}
    s_mov_b32 exec_lo, 0x80000000
    s_mov_b32 exec_hi, 0x80000000
    buffer_store_dword v{g}, v{g+1}, {SW}, s5 offen {ST}
    s_mov_b64 exec, 15
    v_mov_b32 v{g+2}, 0
    v_lshlrev_b32 v{g+3}, 2, v{vL}
    s_lshl_b32 s5, s2, 7
    s_lshl_b32 s6, {sW}, 4
    s_add_u32 s5, s5, s6
    s_add_u32 s6, s5, {WS_FLAG}
    s_add_u32 s5, s5, {WS_CNT}
    buffer_store_dword v{g+2}, v{g+3}, {SW}, s6 offen {ST}
    buffer_store_dword v{g+2}, v{g+3}, {SW}, s5 offen {ST}
    s_mov_b64 exec, -1
    """)
    if cfg.get("stamps"):
        stamp(e, 4, cfg)
        e("s_waitcnt vmcnt(0)")
        stamp(e, 5, cfg)
        stamp_flush(e, cfg, 8, 0, SW, "L1_st")
        e(f"""
        v_lshlrev_b32 v1, 2, v0
        v_cmp_gt_u32 vcc, 8, v0
        s_and_saveexec_b64 s[68:69], vcc
        s_cbranch_execz L1_st2
        buffer_store_dword a225, v1, {SW}, s3 offen offset:32
        L1_st2:
        """)
    e("L1_end:")
    e("s_endpgm")
    return K, e.text(), dict(vgpr=512, accum=256, sgpr=102)


class VQ:
    def __init__(self, init=()):
        self.q = list(init)
    def op(self, tag): self.q.append(tag)
    def need(self, *tags):
        last = max((i for i, t in enumerate(self.q) if t in tags), default=-1)
        n = len(self.q) - 1 - last
        self.q = self.q[last + 1:]
        assert n <= 63
        return n


class Gaps:
    def __init__(self, n):
        self.n = n; self.load = [0] * n; self.items = []
    @staticmethod
    def w(x):
        if isinstance(x, list): return sum(Gaps.w(y) for y in x)
        t = x[0] if isinstance(x, tuple) else x
        if t.endswith(":"): return 0
        return 2 if t.startswith(("buffer", "v_exp", "v_rcp", "v_mfma")) else 1
    def put(self, p, x):
        self.items.append((p, x)); self.load[p] += self.w(x)
    def seq(self, xs, lo, hi, cap=2):
        pos = []; p = lo
        for i, x in enumerate(xs):
            p = max(p, lo + (i * (hi - lo)) // len(xs))
            q = p
            while q < hi and self.load[q] + self.w(x) > cap: q += 1
            if q >= hi:
                q = min(range(p, hi), key=lambda z: self.load[z])
            self.put(q, x); pos.append(q); p = q
        return pos


def gen_k2(cfg):
    e = Em()
    K = "gm2_kernel"
    SW, SB, SO, SB2 = "s[8:11]", "s[12:15]", "s[16:19]", "s[20:23]"
    sW, sRB, sNB, sKQ, sI, sJ = "s24", "s25", "s26", "s27", "s28", "s29"
    sAr = ["s30", "s31"]; sAo = "s32"; sBl = ["s33", "s34"]; sBo = "s35"
    sLa, sLb = "s36", "s37"
    sCol, sMT, sHD, sM16, sCntP, sCntC, sXo, sT = "s50", "s51", "s52", "s53", "s54", "s55", "s56", "s57"
    sXi = [None, "s58", "s59", "s60"]; sFl = "s61"
    vL, vL16, vA2 = 1, 2, 3
    vB = 4
    rA, rB = 6, 9
    vOne, vFa = 15, 16
    vG = 20
    vFl = 44
    T = 24
    ACC = 48
    def acc(R, L, t, m): return ACC + (((R * 2 + L) * 2 + t) * 4 + m) * 4
    AA = ACC + 128
    def acca(t, m): return AA + (t * 4 + m) * 4
    def afr(buf, R, m, ks): return buf * 64 + ((R * 4 + m) * 2 + ks) * 4
    def bfr(L, t, ks, buf=0): return 128 + buf * 32 + ((L * 2 + t) * 2 + ks) * 4
    G2 = cfg.get("G", 4) == 2
    SLOT, NR = (32768, 4) if G2 else (24576, 6)
    SPARE = SLOT * NR
    NS1, NS2 = 14, 16
    NP1 = 2 * NS1; NP = NP1 + NS2
    RO = 1 if G2 else 2
    U2 = NP1 + RO - 1
    NX = 1 if G2 else 3

    e(f"""
    s_cmp_ge_u32 s2, 256
    s_cbranch_scc1 L2_end
    """)
    stamp(e, 0, cfg)
    e(f"""
    s_load_dwordx2 s[46:47], s[0:1], 72
    s_load_dwordx2 s[42:43], s[0:1], 40
    s_load_dwordx2 s[40:41], s[0:1], 16
    s_load_dwordx2 s[44:45], s[0:1], 56
    v_lshrrev_b32 v{T}, 6, v0
    v_and_b32 v{vL}, 63, v0
    v_readfirstlane_b32 {sW}, v{T}
    v_lshlrev_b32 v{vL16}, 4, v{vL}
    v_add_u32 v{vA2}, {A2_KB*1024 - 2048}, v{vL16}
    s_mov_b32 s63, s2
    """)
    XM = {0: None, 1: [3, 4, 5, 0, 1, 2, 6, 7], 2: [0, 3, 1, 4, 5, 2, 6, 7], 3: [3, 0, 1, 4, 5, 2, 6, 7], 4: [1, 2, 0, 3, 4, 5, 6, 7], 5: [3, 4, 2, 0, 1, 5, 6, 7]}[cfg.get("xmap", 0)]
    if XM:
        e("s_and_b32 s2, s63, 0xc0")
        for lb, pb in enumerate(XM[:6]):
            e(f"s_bfe_u32 s3, s63, {0x10000 | pb}\ns_lshl_b32 s3, s3, {lb}\ns_or_b32 s2, s2, s3")
    e(f"""
    s_and_b32 {sKQ}, s2, 3
    s_and_b32 s3, s2, 4
    s_bfe_u32 s4, s2, 0x20003
    s_add_u32 {sRB}, s3, s4
    s_lshr_b32 {sNB}, s2, 5
    s_lshr_b32 {sI}, {sW}, 1
    s_and_b32 {sJ}, {sW}, 1
    s_lshl_b32 {sLa}, {sW}, 12
    s_lshl_b32 {sLb}, {sW}, 11
    s_lshl_b32 s3, {sRB}, 4
    s_lshl_b32 s4, {sW}, 1
    s_add_u32 s3, s3, s4
    s_lshl_b32 s4, {sKQ}, 2
    s_and_b32 s4, s4, 8
    s_add_u32 s5, s3, s4
    s_xor_b32 s6, s5, 8
    s_mul_i32 s5, s5, {A2_KB*1024}
    s_mul_i32 s6, s6, {A2_KB*1024}
    {f"s_and_b32 s7, {sKQ}, 1" if G2 else f"s_mov_b32 s7, {sKQ}"}
    s_mul_i32 s7, s7, {(56 if G2 else 28)*1024}
    s_add_u32 {sAo}, s5, {112*1024}
    s_add_u32 {sAr[0]}, s5, s7
    s_add_u32 {sAr[1]}, s6, s7
    s_mov_b32 s10, {WS_SIZE}
    s_mov_b32 s11, 0x20000
    s_waitcnt lgkmcnt(0)
    s_mov_b32 s8, s46
    s_mov_b32 s9, s47
    """)
    stamp(e, 1, cfg, 2)

    def grpA(u, sreg, fl=""):
        r = [f"s_add_u32 m0, {sLa}, {(u % NR) * SLOT}"]
        r += [(f"buffer_load_dwordx4 v{vL16 if q < 2 else vA2}, {SW}, {sreg} offen offset:{q*1024} {fl}lds", ("u", u)) for q in range(4)]
        return r + [f"s_add_u32 {sreg}, {sreg}, 2048"]

    def grpB(u, srd, sreg, line=0):
        r = [f"s_add_u32 m0, {sLb}, {(u % NR) * SLOT + 16384 + line * 8192}"]
        r += [(f"buffer_load_dwordx4 v{vB+q}, {srd}, {sreg} offen offset:{q*1024} lds", ("u", u)) for q in range(2)]
        return r + [f"s_add_u32 {sreg}, {sreg}, {64*2048}"]

    def slot(u):
        if G2:
            if u >= U2: return grpB(u, SB2, sBo) + grpA(u, sAo, "sc1 ")
            if u == 0: return grpA(u, sAr[0]) + grpB(u, SB, sBl[0]) + grpB(u, SB, sBl[1], 1)
            return grpB(u, SB, sBl[0]) + grpB(u, SB, sBl[1], 1) + grpA(u, sAr[0])
        if u == 0: return grpA(0, sAr[0])
        if u == 1: return grpA(1, sAr[1]) + grpB(1, SB, sBl[0])
        if u == NP1: return grpB(u, SB, sBl[1])
        if u > NP1: return grpB(u, SB2, sBo) + grpA(u, sAo, "sc1 ")
        return grpB(u, SB, sBl[1 - (u & 1)]) + grpA(u, sAr[u & 1])

    def reads(u):
        st, off = (u % NR) // 2, ((u % NR) & 1) * SLOT
        if G2:
            ra = [f"ds_read_b128 {ar(afr(u & 1, 0, m, ks))}, v{rA+st} offset:{off + m*2048 + ks*1024}" for m in range(4) for ks in range(2)]
            rb = [f"ds_read_b64_tr_b16 {ar(bfr(L, t, ks, u & 1)+hf*2, 2)}, v{rB+t+2*st} offset:{off + L*8192 + ks*4096 + hf*2048}"
                  for L in range(2 if u < U2 else 1) for t in range(2) for ks in range(2) for hf in range(2)]
            out = []; k = len(rb) // 8
            for i in range(8): out += rb[i*k:(i+1)*k] + ra[i:i+1]
            return out
        if u <= NP1:
            R = u & 1; buf = (u // 2) & 1; L = 1 - (u & 1)
            hasA, hasB = u < NP1, u > 0
        else:
            s2 = u - NP1 - 1
            R = 0; buf = (NS1 + s2) & 1; L = s2 & 1
            hasA = hasB = True
        ra = [f"ds_read_b128 {ar(afr(buf, R, m, ks))}, v{rA+st} offset:{off + m*2048 + ks*1024}" for m in range(4) for ks in range(2)] if hasA else []
        rb = [f"ds_read_b64_tr_b16 {ar(bfr(L, t, ks)+hf*2, 2)}, v{rB+t+2*st} offset:{off + ks*4096 + hf*2048}"
              for t in range(2) for ks in range(2) for hf in range(2)] if hasB else []
        out = []
        for i in range(8): out += rb[i:i+1] + ra[i:i+1]
        return out

    vq = VQ()
    born = {}; cur = [-1]
    AGE = {"cnt": 2, "pf": cfg.get("agepf", 1), "o": 2, "opq": 2, "ost": 3, "xst": cfg.get("agex", 2), ("rx", 1): cfg.get("agerx", 2), ("rx", 2): cfg.get("agerx", 2), ("rx", 3): cfg.get("agerx", 2)}
    def emit(x):
        if isinstance(x, list):
            for y in x: emit(y)
            return
        tag = None
        if isinstance(x, tuple): x, tag = x
        e(x)
        if x.startswith("buffer"):
            assert tag is not None, x
            vq.op(tag); born[tag] = cur[0]
    def burst(g):
        for x in g:
            emit(x)
            if isinstance(x, str) and " m0," in x: e("s_nop 0")

    burst(slot(0)[:6])
    if not G2: burst(slot(1)[:6])
    e(f"""
    s_lshl_b32 s3, {sNB}, 1
    s_and_b32 s4, {sKQ}, 1
    s_add_u32 s3, s3, s4
    s_lshl_b32 {sCol}, s3, 7
    s_lshl_b32 s4, {sW}, 15
    s_add_u32 {sBo}, s4, {sCol}
    {f"s_and_b32 s5, {sKQ}, 1" if G2 else f"s_mov_b32 s5, {sKQ}"}
    s_mul_i32 s5, s5, {(1792 if G2 else 896)*2048}
    s_add_u32 {sBl[1]}, {sBo}, s5
    s_xor_b32 {sBl[0]}, {sBl[1]}, 128
    v_lshrrev_b32 v{T}, 3, v{vL}
    v_lshrrev_b32 v{T+1}, 4, v{vL}
    v_and_b32 v{T+2}, 7, v{vL}
    v_lshlrev_b32 v{T+3}, 1, v{T+1}
    v_xor_b32 v{T+3}, v{T+3}, v{T+2}
    v_lshlrev_b32 v{T+3}, 4, v{T+3}
    v_lshl_add_u32 v{vB}, v{T}, 11, v{T+3}
    v_add_u32 v{vB+1}, {16384-1024}, v{vB}
    s_mov_b32 s12, s42
    s_mov_b32 s13, s43
    s_mov_b32 s14, {3584*2048}
    s_mov_b32 s15, 0x20000
    """)
    burst(slot(RO - 1)[6:])
    burst(slot(RO))
    stamp(e, 2, cfg, 2)
    vZa, vGa = T + 8, T + 9
    e(f"""
    s_mov_b32 s16, s44
    s_mov_b32 s17, s45
    s_mov_b32 s18, {2048*2048}
    s_mov_b32 s19, 0x20000
    s_mov_b32 s20, s40
    s_mov_b32 s21, s41
    s_mov_b32 s22, {1024*2048}
    s_mov_b32 s23, 0x20000
    s_lshl_b32 s4, {sI}, 13
    v_add_u32 v{rA}, s4, v{vL16}
    v_add_u32 v{rA+1}, {2*SLOT}, v{rA}
    v_add_u32 v{rA+2}, {4*SLOT}, v{rA}
    v_lshlrev_b32 v{vZa}, 6, v{T+2}
    v_lshl_add_u32 v{vZa}, v{T+1}, 4, v{vZa}
    v_lshrrev_b32 v{T+3}, 2, v{vL}
    v_lshlrev_b32 v{T+3}, 7, v{T+3}
    v_bfe_u32 v{T+4}, v{vL}, 3, 2
    s_lshl_b32 s4, {sJ}, 1
    v_xor_b32 v{T+4}, s4, v{T+4}
    v_lshl_add_u32 v{T+3}, v{T+4}, 5, v{T+3}
    v_and_b32 v{T+4}, 3, v{vL}
    v_lshl_add_u32 v{T+3}, v{T+4}, 3, v{T+3}
    v_add_u32 v{rB}, 16384, v{T+3}
    v_xor_b32 v{rB+1}, 32, v{rB}
    v_add_u32 v{rB+2}, {2*SLOT}, v{rB}
    v_add_u32 v{rB+3}, {2*SLOT}, v{rB+1}
    v_add_u32 v{rB+4}, {4*SLOT}, v{rB}
    v_add_u32 v{rB+5}, {4*SLOT}, v{rB+1}
    v_mov_b32 v{vOne}, 1
    v_xor_b32 v{vFa}, s2, v{T+4}
    v_lshlrev_b32 v{vFa}, 7, v{vFa}
    v_lshl_add_u32 v{vFa}, v{T+4}, 2, v{vFa}
    v_and_b32 v{vGa}, 15, v{vL}
    v_lshlrev_b32 v{vGa}, 2, v{vGa}
    s_lshr_b32 {sMT}, s63, 5
    s_and_b32 s3, s63, 7
    s_lshl_b32 s3, s3, 2
    s_bfe_u32 s4, s63, 0x20003
    s_add_u32 {sHD}, s3, s4
    {f"s_mov_b32 {sMT}, {sRB}" if cfg.get("omap") else ""}
    {f"s_lshl_b32 {sHD}, {sKQ}, 3" if cfg.get("omap") else ""}
    {f"s_add_u32 {sHD}, {sHD}, {sNB}" if cfg.get("omap") else ""}
    s_lshl_b32 {sM16}, {sMT}, 4
    s_lshl_b32 s5, {sW}, 2
    s_add_u32 {sM16}, {sM16}, s5
    s_lshl_b32 {sCntP}, {sMT}, 7
    s_add_u32 {sCntP}, {sCntP}, {WS_CNT}
    s_lshl_b32 {sCntC}, {sRB}, 7
    s_add_u32 {sCntC}, {sCntC}, {WS_CNT}
    s_lshl_b32 s4, {sW}, 4
    s_add_u32 {sFl}, s4, {WS_FLAG}
    s_lshl_b32 s3, s2, 16
    s_add_u32 s4, {sLa}, {WS_XCH}
    s_add_u32 {sXo}, s3, s4
    """)
    for d in (1, 2, 3):
        e(f"s_xor_b32 s5, s3, {d << 16}")
        e(f"s_add_u32 s5, s5, s4")
        e(f"s_add_u32 {sXi[d]}, s5, {d << 14}")
    stamp(e, 3, cfg, 2)
    e(f"s_waitcnt vmcnt({vq.need(('u', RO - 1))})")
    e("s_barrier")
    stamp(e, 1, cfg); stamp(e, 4, cfg, 2)
    rd = reads(0) if G2 else reads(1) + reads(0)
    for x in rd[:10]: e(x)
    g3 = slot(RO + 1)
    for i in range(len(g3)):
        emit(g3[i])
        for x in rd[10 + (i * 14) // len(g3):10 + ((i + 1) * 14) // len(g3)]: e(x)
    stamp(e, 5, cfg, 2)
    e(f"s_waitcnt vmcnt({vq.need(('u', RO))}) lgkmcnt(0)")
    e("s_barrier")
    stamp(e, 2, cfg); stamp(e, 6, cfg, 2); stamp(e, 7, cfg, 2)

    KP, ZPv, PQv = AA, 208, 216
    oloads = [f"s_lshl_b32 {sT}, {sHD}, 15", f"s_lshl_b32 s5, {sW}, 10", f"s_add_u32 {sT}, {sT}, s5", f"s_add_u32 {sT}, {sT}, {WS_KVP}"]
    for p in range(8):
        oloads += [(f"buffer_load_dwordx4 {vr(KP+p*4)}, v{vL16}, {SW}, {sT} offen", "o")] + ([f"s_add_u32 {sT}, {sT}, 4096"] if p < 7 else [])
    oloads += [f"s_lshl_b32 {sT}, {sHD}, 10", f"s_add_u32 {sT}, {sT}, {WS_ZP}",
               (f"buffer_load_dwordx4 {vr(ZPv)}, v{vZa}, {SW}, {sT} offen", "o"),
               (f"buffer_load_dwordx4 {vr(ZPv+4)}, v{vZa}, {SW}, {sT} offen offset:512", "o"),
               f"s_lshl_b32 {sT}, {sM16}, 5", f"s_add_u32 {sT}, {sT}, {sHD}", f"s_lshl_b32 {sT}, {sT}, 10", f"s_add_u32 {sT}, {sT}, {WS_PQ}"]
    for m in range(4):
        oloads += [(f"buffer_load_dwordx4 {vr(PQv+m*4)}, v{vL16}, {SW}, {sT} offen", "opq")] + ([f"s_add_u32 {sT}, {sT}, 32768"] if m < 3 else [])
    o1 = []
    for stp in (4, 2, 1):
        for p in range(stp):
            for h in range(4):
                o1.append(f"v_add_f32 v{KP+p*4+h}, v{KP+p*4+h}, v{KP+(p+stp)*4+h}")
    o1 += [f"v_cvt_pk_bf16_f32 v{KP}, v{KP}, v{KP+1}", f"v_cvt_pk_bf16_f32 v{KP+1}, v{KP+2}, v{KP+3}",
           f"s_lshl_b32 s4, {sJ}, 10", f"s_lshl_b32 s5, {sI}, 3", "s_add_u32 s4, s4, s5", f"s_add_u32 s4, s4, {SPARE}",
           f"v_add_u32 v{T}, s4, v{vL16}", f"v_add_u32 v{T+1}, {SPARE}, v{vL16}", f"ds_write_b64 v{T}, {vr(KP,2)}"]
    o2 = [f"ds_read_b128 {vr(KP+4)}, v{T+1}", f"ds_read_b128 {vr(KP+8)}, v{T+1} offset:1024"]
    for dpp in ("quad_perm:[1,0,3,2]", "quad_perm:[2,3,0,1]", "row_half_mirror"):
        for i in range(8):
            o2.append(f"v_add_f32_dpp v{ZPv+i}, v{ZPv+i}, v{ZPv+i} {dpp} row_mask:0xf bank_mask:0xf")
    o2 += [f"v_cvt_pk_bf16_f32 v{ZPv+i}, v{ZPv+2*i}, v{ZPv+2*i+1}" for i in range(4)]
    sT2 = "s62"
    o2 += [f"s_mul_i32 {sT2}, {sM16}, {A2_KB*1024}", f"s_add_u32 s5, {sHD}, 112", "s_lshl_b32 s5, s5, 10", f"s_add_u32 {sT2}, {sT2}, s5"]
    def oreg(m, k):
        return [232, KP + 12][m & 1] + k * 4
    def o3m(m):
        return [mfma(vr(oreg(m, 0)), vr(ZPv), vr(PQv + m * 4), "0"), mfma(vr(oreg(m, 1)), vr(KP + 4), vr(PQv + m * 4), "0"),
                mfma(vr(oreg(m, 2)), vr(KP + 8), vr(PQv + m * 4), "0")]
    def o3v(m):
        d, o = oreg(m, 0), oreg(m, 1)
        r = [f"v_add_f32 v{d}, {EPS:#x}, v{d}", f"v_rcp_f32 v{d}, v{d}", "s_nop 0"]
        r += [f"v_mul_f32 v{o+h}, v{d}, v{o+h}" for h in range(8)]
        r += [f"v_cvt_pk_bf16_f32 v{PQv+m*4+h}, v{o+h*2}, v{o+h*2+1}" for h in range(4)]
        r += [(f"buffer_store_dwordx4 {vr(PQv+m*4)}, v{vL16}, {SW}, {sT2} offen {cfg.get('sto2', 'sc1')}", "ost")]
        if m < 3: r += [f"s_add_u32 {sT2}, {sT2}, {A2_KB*1024}"]
        return r
    gloads = [f"s_lshl_b32 s4, {sRB}, 10", f"s_lshl_b32 s5, {sKQ}, 8", "s_and_b32 s5, s5, 512", "s_add_u32 s4, s4, s5",
              f"s_lshl_b32 s5, {sI}, 8", "s_add_u32 s4, s4, s5", f"s_add_u32 {sT}, s4, {WS_G}"]
    gloads += [(f"buffer_load_dword v{vG+m}, v{vGa}, {SW}, {sT} offen offset:{m*64}", "g") for m in range(4)]

    tq = [0]
    def send(R, L):
        d = (R << 1) | (1 - L)
        out = []
        for m in range(4):
            r = [f"s_add_u32 {sT2}, {sXo}, {d << 14}"] if m == 0 else []
            x = T + 4 * (tq[0] % 4); tq[0] += 1
            for t in range(2):
                for h in range(2):
                    r.append(f"v_cvt_pk_bf16_f32 v{x+2*t+h}, v{acc(R,L,t,m)+2*h}, v{acc(R,L,t,m)+2*h+1}")
            r.append((f"buffer_store_dwordx4 {vr(x)}, v{vL16}, {SW}, {sT2} offen offset:{m*1024} {cfg.get('stx', 'sc1')}", "xst"))
            out.append(r)
        return out
    sends = send(0, 0) if G2 else send(0, 0) + send(1, 0) + send(1, 1)
    SPLAN = [int(c) for c in str(cfg.get("splan", "04" if G2 else "84"))]
    RPLAN = str(cfg.get("rplan", "12"))
    RX = acc(1, 0, 0, 0)
    def rx(d, m): return RX + ((d - 1) * 4 + m) * 4
    def recv(d):
        return [(f"buffer_load_dwordx4 {vr(rx(d, m))}, v{vL16}, {SW}, {sXi[d]} offen offset:{m*1024} sc1", ("rx", d)) for m in range(4)]
    def addrx(d):
        r = []
        for m in range(4):
            for t in range(2):
                for h in range(2):
                    s_ = rx(d, m) + 2 * t + h; b = acc(0, 1, t, m) + 2 * h; x = T + 2 * ((2 * t + h) & 1)
                    r += [f"v_lshlrev_b32 v{x}, 16, v{s_}", f"v_and_b32 v{x+1}, 0xffff0000, v{s_}", f"v_pk_add_f32 {vr(b,2)}, {vr(b,2)}, {vr(x,2)}"]
        return r

    def spin(lab, load, test):
        e(f"""
        {test}
        s_cbranch_scc1 {lab}_ok
        s_mov_b32 s5, 0
        {lab}_spin:
        s_add_u32 s5, s5, 1
        s_cmp_gt_u32 s5, 0x40000
        s_cbranch_scc1 {lab}_ok
        s_sleep 1
        {load}
        s_waitcnt vmcnt(0)
        {test}
        s_cbranch_scc0 {lab}_spin
        {lab}_ok:
        """)
    cnt_load = f"buffer_load_dword v{vFl}, off, {SW}, {sCntC} sc1"
    cnt_test = f"v_readfirstlane_b32 s4, v{vFl}\ns_nop 0\ns_cmp_ge_u32 s4, 32"
    fl_load = f"buffer_load_dwordx4 {vr(vFl)}, off, {SW}, {sT} sc1"
    fl_test = f"v_and_b32 v{vFl}, v{vFl+1}, v{vFl+2}\nv_and_b32 v{vFl}, v{vFl}, v{vFl+3}\ns_nop 0\nv_readfirstlane_b32 s4, v{vFl}\ns_nop 0\ns_cmp_eq_u32 s4, 1"

    if G2: fl_test = f"v_readfirstlane_b32 s4, v{vFl+1}\ns_nop 0\ns_cmp_eq_u32 s4, 1"
    RATE = cfg.get("rate", 10 if G2 else 8)
    OAT = cfg.get("oat", 4)
    stream = []
    for u in range(RO + 2, NP + RO - 1):
        stream += [(u - NR - RO + 1, x) for x in slot(u)]
        if u >= OAT + RO - 2:
            k = cfg.get("oper", 2)
            while oloads and k > 0:
                x = oloads.pop(0); stream.append((0, x))
                if isinstance(x, tuple): k -= 1
    isv = lambda x: isinstance(x, tuple)
    state = dict(o=0, sig=False, cnt=None, fl=None, pf=None, rx=0, add=0)
    FPD = cfg.get("fpd", 2)
    for p in range(NP):
        ph1 = p < NP1
        cur[0] = p
        mf = []
        if G2:
            for L in range(2 if ph1 else 1):
                for t in range(2):
                    for m in range(4):
                        for ks in range(2):
                            mf.append(mfma(vr(acc(0, L, t, m) if ph1 else acca(t, m)), ar(bfr(L, t, ks, p & 1)), ar(afr(p & 1, 0, m, ks)),
                                           "0" if (p in (0, NP1) and ks == 0) else None))
        elif ph1:
            J, L = p // 2, p & 1
            order = [(R, t) for t in range(2) for R in range(2)]
            if p == NP1 - 1: order = [(1, 0), (1, 1), (0, 0), (0, 1)]
            for R, t in order:
                for m in range(4):
                    for ks in range(2):
                        mf.append(mfma(vr(acc(R, L, t, m)), ar(bfr(L, t, ks)), ar(afr(J & 1, R, m, ks)), "0" if (J == 0 and ks == 0) else None))
        else:
            s2 = p - NP1
            for t in range(2):
                for m in range(4):
                    for ks in range(2):
                        mf.append(mfma(vr(acca(t, m)), ar(bfr(s2 & 1, t, ks)), ar(afr((NS1 + s2) & 1, 0, m, ks)), "0" if (s2 == 0 and ks == 0) else None))
        N = len(mf)
        G = Gaps(N)
        if cfg.get("pstamp"):
            if p > 0: G.put(0, f"v_writelane_b32 v17, s{64 + 2*((p-1)&1)}, {p-1}")
            e(f"s_memrealtime s[{64 + 2*(p&1)}:{65 + 2*(p&1)}]")
        if p == NP1: stamp(e, 4, cfg)
        nxt = []
        budget = RATE if ph1 else 6
        DPLAN = str(cfg.get("dplan", "" if G2 else "00"))
        if 0 <= p - (NP1 - 1) < len(DPLAN): budget = int(DPLAN[p - (NP1 - 1)])
        while stream and stream[0][0] <= p and (budget > 0 or not isv(stream[0][1])):
            x = stream[0][1]
            if not isv(x) and budget == 0 and " m0," in x: break
            stream.pop(0); nxt.append(x)
            if isv(x): budget -= 1
        first_o = any(isv(x) and x[1] == ("u", U2) and "sc1" in x[0] for x in nxt) and state["cnt"] != "done"
        if first_o:
            assert state["cnt"] == "loaded" and "cnt" not in vq.q
            stamp(e, 3, cfg)
            spin("L2_o", cnt_load, cnt_test); state["cnt"] = "done"
        pre = []
        if state["cnt"] is None and p == U2 - NR - RO + 1 - 3:
            pre.append((cnt_load, "cnt")); state["cnt"] = "loaded"
        if p == 16: pre += gloads
        if state["fl"] is None and p > NP1 and "xst" not in vq.q and not sends:
            pre.append([f"s_mov_b64 exec, {2 if G2 else 14}", (f"buffer_store_dword v{vOne}, v{vFa}, {SW}, {sFl} offen sc1", "fl"), "s_mov_b64 exec, -1"])
            state["fl"] = p
        elif state["fl"] is not None and state["pf"] is None and p >= state["fl"] + FPD:
            pre += [f"s_lshl_b32 {sT}, s2, 7", f"s_add_u32 {sT}, {sT}, {sFl}", (fl_load, "pf")]
            state["pf"] = p
        elif state["pf"] is not None and state["rx"] < NX and "pf" not in vq.q:
            if state["rx"] == 0: spin("L2_p", fl_load, fl_test)
            k = int(RPLAN[0]) if nxt else int(RPLAN[1])
            for _ in range(k):
                if state["rx"] < NX:
                    state["rx"] += 1; pre += recv(state["rx"])
        vm = pre + nxt
        if vm:
            nv = sum(1 for x in vm if isv(x) or isinstance(x, list))
            k = 0; pend = []
            for x in vm:
                if isv(x) or isinstance(x, list):
                    pos = 1 + (k * (N - 1)) // nv; k += 1
                    for y in pend: G.put(pos - 1, y)
                    pend = []
                    G.put(pos, x); lastpos = pos
                else:
                    pend.append(x)
            for y in pend: G.put(min(N - 1, lastpos + 1), y)
        if p + 2 <= NP:
            G.seq(reads(p + RO), 0, N - (5 if ph1 else 2))
        if state["o"] == 0 and not any(isv(x) and x[1] == "o" for _, x in stream) and "o" not in vq.q and not any(isv(x) and x[1] == "o" for x in nxt):
            G.seq(o1, 0, N - 4); state["o"] = 1
        elif state["o"] == 1:
            G.seq(o2, 0, N - 2); state["o"] = 2
        elif state["o"] in (2, 3) and not any(isv(x) and x[1] == "opq" for _, x in stream) and "opq" not in vq.q and not any(isv(x) and x[1] == "opq" for x in nxt):
            m0 = (state["o"] - 2) * 2
            G.seq(o3m(m0) + o3m(m0 + 1), 0, 7, cap=3)
            G.seq(o3v(m0) + o3v(m0 + 1), 12, N); state["o"] += 1
        elif state["o"] == 4 and "ost" not in vq.q:
            state["sig"] = p
            state["o"] = 5
            G.put(1, [f"s_cmp_eq_u32 {sW}, 0", "s_cbranch_scc0 L2_nosig", "s_mov_b64 exec, 1",
                      f"buffer_atomic_add v{vOne}, off, {SW}, {sCntP}|x", "s_mov_b64 exec, -1", "L2_nosig:"])
        if 0 <= p - (NP1 - 1) < len(SPLAN):
            k = SPLAN[p - (NP1 - 1)]
            G.seq(sum(sends[:k], []), 6 if ph1 else 0, N, cap=3); del sends[:k]
        if state["add"] < state["rx"] and ("rx", state["add"] + 1) not in vq.q and not any(isv(x) and x[1] == ("rx", state["add"] + 1) for x in pre):
            state["add"] += 1
            G.seq(addrx(state["add"]), 0, N, cap=4)
        for x in place(mf, G.items):
            if isinstance(x, str) and x.endswith("|x"): e(x[:-2])
            else: emit(x)
        if p + 3 <= NP:
            assert not any(isv(x) and x[1] == ("u", p + RO + 1) for _, x in stream), p
            old = [t for t in AGE if t in vq.q and p - born[t] >= AGE[t]]
            e(f"s_waitcnt vmcnt({vq.need(('u', p + RO + 1), *old)}) lgkmcnt(0)")
            e("s_barrier")
        elif p + 2 <= NP:
            old = [t for t in AGE if t in vq.q and p - born[t] >= AGE[t]]
            e(f"s_waitcnt vmcnt({vq.need(*old)}) lgkmcnt(0)")
    assert state["o"] == 5 and state["cnt"] == "done" and state["pf"] is not None, state
    stamp(e, 5, cfg)
    if state["rx"] < NX:
        if state["rx"] == 0:
            e("s_waitcnt vmcnt(0)"); vq.q = []
            spin("L2_p", fl_load, fl_test)
        while state["rx"] < NX:
            state["rx"] += 1; emit(recv(state["rx"]))
    vOa = T + 16
    e(f"""
    v_and_b32 v{vOa}, 15, v{vL}
    v_bfe_u32 v{T+1}, v{vL}, 4, 1
    v_lshrrev_b32 v{T+2}, 5, v{vL}
    v_lshlrev_b32 v{vOa}, 11, v{vOa}
    v_lshl_add_u32 v{vOa}, v{T+1}, 5, v{vOa}
    v_lshl_add_u32 v{vOa}, v{T+2}, 4, v{vOa}
    s_lshl_b32 s4, {sRB}, 19
    s_lshl_b32 s5, {sKQ}, 17
    s_and_b32 s5, s5, {1 << 18}
    s_add_u32 s4, s4, s5
    s_lshl_b32 s5, {sI}, 17
    s_add_u32 s4, s4, s5
    s_lshl_b32 s5, {sJ}, 6
    s_add_u32 s4, s4, s5
    s_add_u32 s4, s4, {sCol}
    """)
    while state["add"] < NX:
        state["add"] += 1
        e(f"s_waitcnt vmcnt({vq.need(('rx', state['add']))})")
        for x in addrx(state["add"]): e(x)
    for m in range(4):
        gg = T + 4; og = T + 6
        e(f"v_mov_b32 v{gg}, v{vG+m}")
        e(f"v_sub_f32 v{og}, 1.0, v{vG+m}")
        for t in range(2):
            for h in range(2):
                b = acc(0, 1, t, m) + 2 * h; a = acca(t, m) + 2 * h
                e(f"v_pk_mul_f32 {vr(b,2)}, {vr(b,2)}, {vr(og,2)} op_sel_hi:[1,0]")
                e(f"v_pk_fma_f32 {vr(b,2)}, {vr(a,2)}, {vr(gg,2)}, {vr(b,2)} op_sel_hi:[1,0,1]")
        r = acc(0, 0, 0, m)
        for t in range(2):
            for h in range(2):
                e(f"v_cvt_pk_bf16_f32 v{r+2*t+h}, v{acc(0,1,t,m)+2*h}, v{acc(0,1,t,m)+2*h+1}")
        e(f"""
        s_nop 1
        v_permlane16_swap_b32 v{r}, v{r+2}
        v_permlane16_swap_b32 v{r+1}, v{r+3}
        buffer_store_dwordx4 {vr(r)}, v{vOa}, {SO}, s4 offen {cfg.get("sto", "")}
        """)
        if m < 3: e(f"s_add_u32 s4, s4, {16*2048}")
    if cfg.get("stamps"):
        stamp(e, 6, cfg)
        e("s_waitcnt vmcnt(0)")
        stamp(e, 7, cfg)
        stamp_flush(e, cfg, 8, 1, SW, "L2_st")
        if cfg.get("pstamp"):
            e(f"""
            v_writelane_b32 v17, s{64 + 2*((NP-1)&1)}, {NP-1}
            v_lshlrev_b32 v1, 2, v0
            s_lshl_b32 s3, s2, 8
            s_add_u32 s3, s3, {WS_STAMP + 0x10000}
            s_cmp_eq_u32 {sW}, 0
            s_cbranch_scc0 L2_st2
            buffer_store_dword v17, v1, {SW}, s3 offen
            L2_st2:
            """)
    e("L2_end:")
    e("s_endpgm")
    if cfg.get("verbose"): print(state)
    return K, e.text(), dict(vgpr=448, accum=256, sgpr=96)


def gen_k3(cfg):
    kA, iA, kB, iB, own = [int(c) for c in cfg["probe"]]
    e = Em()
    e(f"""
    s_cmp_ge_u32 s2, 1
    s_cbranch_scc1 L3_end
    s_load_dwordx2 s[4:5], s[0:1], 72
    v_lshlrev_b32 v1, 6, v0
    v_mov_b32 v2, 0
    s_waitcnt lgkmcnt(0)
    s_mov_b32 s8, s4
    s_mov_b32 s9, s5
    s_mov_b32 s10, {WS_SIZE}
    s_mov_b32 s11, 0x20000
    s_mov_b32 s12, {WS_STAMP + kA*16384 + iA*4}
    s_mov_b32 s13, {WS_STAMP + kB*16384 + iB*4}
    buffer_load_dword v3, v{1 if own else 2}, s[8:11], s12 offen
    buffer_load_dword v4, v1, s[8:11], s13 offen
    s_waitcnt vmcnt(0)
    v_sub_u32 v3, v4, v3
    v_min_u32 v3, 20000, v3
    s_memrealtime s[14:15]
    s_waitcnt lgkmcnt(0)
    L3_spin:
    s_memrealtime s[16:17]
    s_waitcnt lgkmcnt(0)
    s_sub_u32 s16, s16, s14
    v_cmp_lt_u32 vcc, s16, v3
    s_nop 4
    s_cbranch_vccnz L3_spin
    L3_end:
    s_endpgm
    """)
    return "gm3_kernel", e.text(), dict(vgpr=8, accum=8, sgpr=32)


HEAD = """; Kernarg layout for this problem (80 bytes, ptrs only, base s[0:1]):
;   offset   0: d_in[0] A_x  shape=(1, 2048, 1024) dtype=bfloat16
;   offset   8: d_in[1] A_wqkv  shape=(1024, 3072) dtype=bfloat16
;   offset  16: d_in[2] A_wo  shape=(1024, 1024) dtype=bfloat16
;   offset  32: d_in[4] B_w1  shape=(1024, 3584) dtype=bfloat16
;   offset  40: d_in[5] B_w2  shape=(3584, 1024) dtype=bfloat16
;   offset  48: d_in[6] gate_w  shape=(1024,) dtype=bfloat16
;   offset  56: d_out     shape=(1, 2048, 1024) dtype=bfloat16
"""


def build(cfg=None):
    cfg = cfg or {}
    ks = [gen_k1(cfg), gen_k2(cfg)]
    s = HEAD
    order = cfg.get("order", "12")
    if "0" in order:
        ks.append(("gm0_kernel", "  s_endpgm\n", dict(vgpr=8, accum=8, sgpr=16)))
    if "4" in order:
        e = Em()
        e(f"""
        s_memrealtime s[14:15]
        s_cmp_ge_u32 s2, 1
        s_cbranch_scc1 L4_end
        s_load_dwordx2 s[4:5], s[0:1], 72
        s_waitcnt lgkmcnt(0)
        s_mov_b32 s8, s4
        s_mov_b32 s9, s5
        s_mov_b32 s10, {WS_SIZE}
        s_mov_b32 s11, 0x20000
        s_mov_b32 s12, {WS_STAMP + 2*16384}
        v_mov_b32 v1, s14
        buffer_store_dword v1, off, s[8:11], s12 sc1
        L4_end:
        s_endpgm
        """)
        ks.append(("gm4_kernel", e.text(), dict(vgpr=8, accum=8, sgpr=32)))
    if "3" in order:
        ks.append(gen_k3(cfg))
    for c in order:
        s += f"; @launch kernel=gm{c}_kernel grid=(256,1,1) block=(256,1,1) lds={163840 if c in '12' else 0}\n"
    s += '.amdgcn_target "amdgcn-amd-amdhsa--gfx950"\n.text\n'
    for k, body, d in ks:
        s += f".globl {k}\n.p2align 8\n.type {k},@function\n{k}:\n" + body
    s += 'gm_text_end:\n.section .rodata,"a"\n'
    for k, body, d in ks:
        s += f""".p2align 6
.amdhsa_kernel {k}
  .amdhsa_next_free_vgpr {d['vgpr']}
  .amdhsa_next_free_sgpr {d['sgpr']}
  .amdhsa_accum_offset {d['accum']}
  .amdhsa_group_segment_fixed_size 0
  .amdhsa_kernarg_size 80
  .amdhsa_user_sgpr_count 2
  .amdhsa_user_sgpr_kernarg_segment_ptr 1
  .amdhsa_system_sgpr_workgroup_id_x 1
  .amdhsa_float_denorm_mode_32 3
.end_amdhsa_kernel
"""
    return s


if __name__ == "__main__":
    out = sys.argv[1] if len(sys.argv) > 1 else f"cdna_kernels/{NAME}.s"
    cfg = {}
    for a in sys.argv[2:]:
        k, v = a.split("=")
        cfg[k] = int(v) if (v.lstrip("-").isdigit() and k not in ("order", "probe", "dplan", "splan", "rplan")) else v
    txt = build(cfg)
    import hazard
    assert hazard.check(txt) == 0
    open(out, "w").write(txt)
    print("wrote", out)
```
